```python
import torch

def _softmax(x, axis=-1):
    return torch.softmax(x, dim=axis)
def _gelu(x):
    return torch.nn.functional.gelu(x, approximate="tanh")
def _silu(x):
    return torch.nn.functional.silu(x)
def _sigmoid(x):
    return torch.sigmoid(x)
def _layernorm(x, axis=-1, eps=1e-5):
    m = x.mean(dim=axis, keepdim=True)
    v = x.var(dim=axis, keepdim=True, unbiased=False)
    return (x - m) / torch.sqrt(v + eps)
def _scatter_add(tgt, idx, src, axis=0):
    return tgt.clone().index_add_(axis, idx, src)
def _segment_sum(src, seg, n):
    out = torch.zeros((n,) + src.shape[1:], dtype=src.dtype)
    return out.index_add_(0, seg, src)
def _pad(x, pw):
    flat = tuple(v for pair in reversed(pw) for v in pair)
    return torch.nn.functional.pad(x, flat)

kernel_name = 'interleave_layers__softmax_full_mha__glu_gated_swiglu__prompt'

def setup_inputs():

    _w = (lambda a: (lambda t: t.to(torch.bfloat16) if t.is_floating_point() else t)(torch.as_tensor(a)))
    def _A_setup():
        B, S, D = 1, 2048, 576
        return {
            "x": _w((lambda *s: torch.randn(*s, dtype=torch.bfloat16) * 0.05)(B, S, D)),
            "wqkv": _w((lambda *s: torch.randn(*s, dtype=torch.bfloat16) * 0.05)(D, 3 * D)),
            "wo": _w((lambda *s: torch.randn(*s, dtype=torch.bfloat16) * 0.05)(D, D)),
        }
    _A_in = _A_setup()

    def _B_setup():
        B, S, D, F = 1, 2048, 576, 4608
        return {
            "x": _w((lambda *s: torch.randn(*s, dtype=torch.bfloat16) * 0.05)(B, S, D)),
            "w1": _w((lambda *s: torch.randn(*s, dtype=torch.bfloat16) * 0.4)(D, F) * (2.0 / D) ** 0.5),
            "w3": _w((lambda *s: torch.randn(*s, dtype=torch.bfloat16) * 0.4)(D, F) * (2.0 / D) ** 0.5),
            "w2": _w((lambda *s: torch.randn(*s, dtype=torch.bfloat16) * 0.4)(F, D) * (2.0 / F) ** 0.5),
        }
    _B_in = _B_setup()

    return {
        "A_x": _A_in["x"],
        "A_wqkv": _A_in["wqkv"],
        "A_wo": _A_in["wo"],
        "B_x": _B_in["x"],
        "B_w1": _B_in["w1"],
        "B_w3": _B_in["w3"],
        "B_w2": _B_in["w2"],
    }

def reference(A_x, A_wqkv, A_wo, B_x, B_w1, B_w3, B_w2):
    def _A_ref(x, wqkv, wo):
        B, S, D = x.shape
        H = 32; Dh = D // H
        qkv = (lambda x, *d: x.permute(*d))((x @ wqkv).reshape(B, S, 3, H, Dh), 2, 0, 3, 1, 4)
        q, k, v = qkv[0], qkv[1], qkv[2]
        scale = Dh ** -0.5
        scores = torch.einsum("bhqd,bhkd->bhqk", q, k) * scale
        p = _softmax(scores, axis=-1)
        o = torch.einsum("bhqk,bhkd->bhqd", p, v)
        return (lambda x, *d: x.permute(*d))(o, 0, 2, 1, 3).reshape(B, S, D) @ wo

    def _B_ref(x, w1, w3, w2):
        gate = torch.einsum("bsd,df->bsf", x, w1)
        up = torch.einsum("bsd,df->bsf", x, w3)
        h = _silu(gate) * up
        out = torch.einsum("bsf,fd->bsd", h, w2)
        return out

    x = A_x
    x = x + _A_ref(_layernorm(x, axis=-1), A_wqkv, A_wo)
    x = x + _B_ref(_layernorm(x, axis=-1), B_w1, B_w3, B_w2)
    x = x + _A_ref(_layernorm(x, axis=-1), A_wqkv, A_wo)
    x = x + _B_ref(_layernorm(x, axis=-1), B_w1, B_w3, B_w2)
    return x
```

```python
import re

_REG = re.compile(r"\b([vas])(\d+)\b|\b([vas])\[(\d+):(\d+)\]")


def regs_of(op):
    out = set()
    for m in _REG.finditer(op):
        if m.group(1):
            out.add((m.group(1), int(m.group(2))))
        else:
            for i in range(int(m.group(4)), int(m.group(5)) + 1):
                out.add((m.group(3), i))
    if re.search(r"\bvcc(_lo|_hi)?\b", op):
        out.add(("s", "vcc"))
    if re.search(r"\bexec(_lo|_hi)?\b", op):
        out.add(("s", "exec"))
    if re.search(r"\bm0\b", op):
        out.add(("s", "m0"))
    return out


TRANS = ("v_exp_", "v_log_", "v_rcp_", "v_rsq_", "v_sqrt_", "v_sin_", "v_cos_")


class Ins:
    __slots__ = ("text", "mn", "kind", "wr", "rd", "passes", "srcc", "srcab", "ws", "label", "target", "wide_store",
                 "data", "is_lds_dma", "dpp")

    def __init__(self, text):
        self.text = text
        t = text.split(";")[0].strip()
        self.label = None
        self.target = None
        self.kind = "other"
        self.wr = set()
        self.rd = set()
        self.passes = 0
        self.srcc = set()
        self.srcab = set()
        self.ws = 1
        self.wide_store = False
        self.data = set()
        self.is_lds_dma = False
        self.dpp = False
        if t.endswith(":"):
            self.label = t[:-1]
            self.mn = ""
            self.ws = 0
            return
        if not t or t.startswith("."):
            self.mn = ""
            self.ws = 0
            return
        parts = t.split(None, 1)
        mn = parts[0]
        self.mn = mn
        rest = parts[1] if len(parts) > 1 else ""
        ops = [o.strip() for o in re.split(r",(?![^\[]*\])", rest)] if rest else []
        if mn == "s_nop":
            self.ws = int(ops[0], 0) + 1
            self.kind = "salu"
        elif mn.startswith("v_mfma"):
            self.kind = "mfma"
            self.wr = regs_of(ops[0])
            self.srcab = regs_of(ops[1]) | regs_of(ops[2])
            self.srcc = regs_of(ops[3])
            self.rd = self.srcab | self.srcc
            self.passes = 8 if "32x32" in mn else 4
        elif mn.startswith("v_"):
            self.kind = "valu"
            self.dpp = "_dpp" in mn
            if mn.startswith("v_permlane") and "swap" in mn:
                self.wr = regs_of(ops[0]) | regs_of(ops[1])
                self.rd = set(self.wr)
            elif mn.startswith(("v_add_co", "v_sub_co", "v_addc_co", "v_subb_co", "v_subrev_co", "v_div_scale",
                                "v_mad_u64", "v_mad_i64")):
                self.wr = regs_of(ops[0]) | regs_of(ops[1])
                for o in ops[2:]:
                    self.rd |= regs_of(o)
            else:
                self.wr = regs_of(ops[0])
                for o in ops[1:]:
                    self.rd |= regs_of(o)
                if mn.startswith(("v_fmac", "v_dot2c", "v_mac", "v_pk_fmac", "v_writelane")) or "UNUSED_PRESERVE" in t \
                        or self.dpp:
                    self.rd |= self.wr
                if mn.startswith("v_cmpx"):
                    self.wr |= {("s", "exec")}
        elif mn.startswith(("buffer_load", "global_load")):
            self.kind = "vmem"
            if " lds" in t or "_lds_" in mn:
                self.is_lds_dma = True
                for o in ops:
                    self.rd |= regs_of(o)
                self.rd.add(("s", "m0"))
            else:
                self.wr = regs_of(ops[0])
                for o in ops[1:]:
                    self.rd |= regs_of(o)
        elif mn.startswith(("buffer_store", "global_store", "buffer_atomic", "global_atomic")):
            self.kind = "vmem"
            for o in ops:
                self.rd |= regs_of(o)
            d = ops[0] if mn.startswith("buffer") else ops[1]
            self.data = regs_of(d)
            self.wide_store = mn.endswith(("x3", "x4"))
            if "atomic" in mn and "sc0" in t:
                self.wr = regs_of(ops[0])
        elif mn.startswith("ds_"):
            self.kind = "ds"
            if mn.startswith(("ds_read", "ds_bpermute", "ds_permute", "ds_swizzle")) or "_rtn" in mn:
                self.wr = regs_of(ops[0])
                for o in ops[1:]:
                    self.rd |= regs_of(o)
            else:
                for o in ops:
                    self.rd |= regs_of(o)
        elif mn.startswith("s_"):
            self.kind = "salu"
            if mn.startswith(("s_cbranch", "s_branch")):
                self.target = ops[0]
            elif mn.startswith(("s_cmp", "s_waitcnt", "s_barrier", "s_endpgm", "s_setprio", "s_sleep", "s_bitcmp")):
                for o in ops:
                    self.rd |= regs_of(o)
            elif ops:
                self.wr = regs_of(ops[0])
                for o in ops[1:]:
                    self.rd |= regs_of(o)
                if "saveexec" in mn:
                    self.wr.add(("s", "exec"))
        else:
            self.kind = "other"


def vec(s):
    return {r for r in s if r[0] in "va"}


def sca(s):
    return {r for r in s if r[0] == "s"}


def need(p, c):
    n = 0
    if p.kind == "valu":
        pv, ps = vec(p.wr), sca(p.wr)
        if c.kind == "mfma":
            if pv & c.rd:
                n = max(n, 2)
            if ("s", "exec") in ps:
                n = max(n, 4)
        if c.kind == "valu":
            if p.mn.startswith(TRANS) and not c.mn.startswith(TRANS) and (pv & c.rd):
                n = max(n, 1)
            if p.mn.startswith(TRANS) and (pv & c.rd):
                n = max(n, 1)
            if ("sdwa" in p.mn or "op_sel" in p.text) and (pv & (c.rd | c.wr)):
                n = max(n, 1)
            if c.mn.startswith("v_permlane") and (pv & c.rd):
                n = max(n, 2)
            if c.dpp and (pv & c.rd):
                n = max(n, 2)
            if c.mn.startswith(("v_readlane", "v_readfirstlane")) and (pv & c.rd):
                n = max(n, 1)
            if ps & c.rd:
                n = max(n, 4 if c.mn.startswith(("v_readlane", "v_writelane", "v_div_fmas")) else 2)
            if ("s", "vcc") in ps and c.mn.startswith(("v_cndmask", "v_addc", "v_subb", "v_div_fmas")):
                n = max(n, 4 if c.mn.startswith("v_div_fmas") else 2)
            if ("s", "exec") in ps:
                n = max(n, 5 if c.dpp else 4)
        if c.kind == "vmem" and (ps & c.rd):
            n = max(n, 5)
        if c.kind == "salu" and (ps & c.rd):
            n = max(n, 1)
        if c.kind == "salu" and c.mn.startswith("s_cbranch_vcc") and ("s", "vcc") in ps:
            n = max(n, 5)
        if c.kind == "salu" and c.mn.startswith("s_cbranch_exec") and ("s", "exec") in ps:
            n = max(n, 5)
    elif p.kind == "mfma":
        big = p.passes == 8
        d = p.wr
        if c.kind == "mfma":
            if d & c.srcab:
                n = max(n, 12 if big else 8)
            if d & c.srcc:
                if c.srcc == d and c.passes == p.passes:
                    pass
                else:
                    n = max(n, 10 if big else 6)
            elif d & c.wr:
                n = max(n, 10 if big else 6)
        elif c.kind in ("valu", "vmem", "ds"):
            if d & (c.rd | c.wr):
                n = max(n, 12 if big else 8)
            if c.kind == "valu" and (p.srcc & c.wr):
                n = max(n, 7 if big else 3)
            if c.kind in ("vmem", "ds") and (p.srcc & c.wr):
                n = max(n, 7 if big else 3)
    elif p.kind == "vmem":
        if p.wide_store and (p.data & c.wr):
            n = max(n, 2)
    elif p.kind == "salu":
        if ("s", "m0") in p.wr and (c.is_lds_dma or "addtid" in c.mn):
            n = max(n, 1)
    return n


LOOKBACK = 16


def required_pad(prev, c):
    dist = 0
    pad = 0
    for p in reversed(prev):
        if p.ws == 0:
            continue
        k = need(p, c)
        if k > dist:
            pad = max(pad, k - dist)
        dist += p.ws
        if dist >= LOOKBACK:
            break
    return pad


def nops(n):
    out = []
    while n > 0:
        k = min(n, 16)
        out.append(Ins(f"s_nop {k-1}"))
        n -= k
    return out


class Kern:
    def __init__(self, name, vgpr, sgpr=96, accum=None):
        self.name = name
        self.ins = []
        self.vmq = []
        self.lgq = []
        self.vgpr = vgpr
        self.sgpr = sgpr
        self.accum = accum
        self.npad = 0
        self.entries = []

    def e(self, s):
        for line in s.strip("\n").split("\n"):
            line = line.strip()
            if line:
                self.ins.append(Ins(line))

    def label(self, l):
        self.ins.append(Ins(l + ":"))

    def vm(self, s, tag=None):
        self.e(s)
        self.vmq.append(tag)

    def lg(self, s, tag=None):
        self.e(s)
        self.lgq.append(tag)

    def _cnt(self, q, tags):
        if not isinstance(tags, (list, set)):
            tags = [tags]
        idx = -1
        for i, t in enumerate(q):
            if t in tags:
                idx = i
        if idx < 0:
            return None
        return len(q) - 1 - idx

    def wait(self, vm=None, lg=None):
        parts = []
        if vm is not None:
            n = self._cnt(self.vmq, vm)
            if n is not None:
                n2 = min(n, 63)
                parts.append(f"vmcnt({n2})")
                self.vmq = self.vmq[len(self.vmq) - n2:] if n2 else []
        if lg is not None:
            n = self._cnt(self.lgq, lg)
            if n is not None:
                n2 = min(n, 15)
                parts.append(f"lgkmcnt({n2})")
                self.lgq = self.lgq[len(self.lgq) - n2:] if n2 else []
        if parts:
            self.e("s_waitcnt " + " ".join(parts))

    def wait_all(self, vm=True, lg=True):
        parts = []
        if vm:
            parts.append("vmcnt(0)")
            self.vmq = []
        if lg:
            parts.append("lgkmcnt(0)")
            self.lgq = []
        self.e("s_waitcnt " + " ".join(parts))

    def fix_hazards(self):
        out = []
        for c in self.ins:
            if c.ws:
                pad = required_pad(out, c)
                if pad:
                    self.npad += pad
                    out.extend(nops(pad))
            out.append(c)
        labels = {c.label: i for i, c in enumerate(out) if c.label}
        res = []
        for i, c in enumerate(out):
            if c.target and c.target in labels:
                seq = [x for x in out[max(0, i - 40):i + 1]]
                pad = 0
                dist = 0
                j = labels[c.target] + 1
                while j < len(out) and dist < LOOKBACK:
                    t = out[j]
                    if t.ws:
                        pad = max(pad, required_pad(seq, t))
                        seq = seq + [t]
                        dist += t.ws
                        if t.mn in ("s_branch", "s_endpgm"):
                            break
                    j += 1
                if pad:
                    self.npad += pad
                    res.extend(nops(pad))
            res.append(c)
        self.ins = res

    def check_regs(self):
        mv = ms = -1
        for c in self.ins:
            for r in c.rd | c.wr:
                if r[0] == "v":
                    mv = max(mv, r[1])
                elif r[0] == "s" and isinstance(r[1], int):
                    ms = max(ms, r[1])
        assert mv < self.vgpr, (self.name, "vgpr", mv, self.vgpr)
        assert ms < self.sgpr, (self.name, "sgpr", ms, self.sgpr)
        return mv, ms

    def text(self):
        self.fix_hazards()
        self.check_regs()
        s = []
        for c in self.ins:
            s.append(c.text if c.label else "    " + c.text)
        return "\n".join(s) + "\n"


def descriptor(name, vgpr, sgpr, accum=None):
    if accum is None:
        accum = min(256, (vgpr + 3) // 4 * 4)
    return f""".amdhsa_kernel {name}
  .amdhsa_next_free_vgpr {vgpr}
  .amdhsa_next_free_sgpr {sgpr}
  .amdhsa_accum_offset {accum}
  .amdhsa_group_segment_fixed_size 0
  .amdhsa_kernarg_size 80
  .amdhsa_user_sgpr_count 2
  .amdhsa_user_sgpr_kernarg_segment_ptr 1
  .amdhsa_system_sgpr_workgroup_id_x 1
.end_amdhsa_kernel
"""
```

```python
from asmlib import *
from layout import *
from k_prep import ws_srd
from k_gemmb import hexf

LDS_A = 8 * 3072 + 64
FLAGOFF = 8 * 3072
Q1 = 16
Q2 = 24
K1 = 28
K2 = 40
VV = 48
PP = 72
CM = 88
SS = 120
OO = 152
NV = 184


def r(b, n):
    return f"v[{b}:{b+n-1}]"


def gen_attn():
    k = Kern("attn_kernel", vgpr=NV, sgpr=56)
    k.e(f"""
    s_cmp_ge_u32 s2, 256
    s_cbranch_scc1 La_end
    s_load_dwordx2 s[4:5], s[0:1], 72
    v_lshrrev_b32 v1, 6, v0
    v_and_b32 v0, 63, v0
    v_readfirstlane_b32 s16, v1
    v_lshlrev_b32 v1, 4, v0
    v_and_b32 v2, 31, v0
    v_lshrrev_b32 v3, 5, v0
    s_and_b32 s17, s16, 3
    s_lshr_b32 s18, s16, 2
    s_and_b32 s19, s2, 7
    s_lshl_b32 s19, s19, 2
    s_bfe_u32 s20, s2, 0x20003
    s_add_u32 s19, s19, s20
    s_lshr_b32 s20, s2, 5
    s_lshl_b32 s21, s20, 3
    s_lshl_b32 s22, s17, 1
    s_add_u32 s21, s21, s22
    s_add_u32 s22, s21, s18
    s_xor_b32 s23, s18, 1
    s_add_u32 s23, s21, s23
    s_lshl_b32 s24, s19, 16
    s_lshr_b32 s25, s19, 1
    s_lshl_b32 s25, s25, 14
    s_and_b32 s26, s19, 1
    s_lshl_b32 s26, s26, 2
    s_add_u32 s25, s25, s26
    v_lshlrev_b32 v4, 3, v2
    v_mul_u32_u24 v5, 288, v3
    v_lshl_add_u32 v5, v2, 4, v5
    s_mov_b32 s28, -1
    s_mov_b32 s29, 0
    s_mov_b32 s30, 0x3ffff
    s_mov_b32 s31, 0x3ffff
    s_mov_b32 s44, 0
    s_waitcnt lgkmcnt(0)
    """)
    ws_srd(k)
    for i in range(4):
        k.e(f"v_mov_b32 v{Q2+i}, 0")
    for i in range(6):
        k.e(f"v_mov_b32 v{K2+i}, 0")
    k.e(f"""
    v_cmp_eq_u32 vcc, 18, v2
    v_cmp_eq_u32 s[32:33], 20, v2
    v_mov_b32 v6, 0x3f803f80
    s_or_b64 vcc, vcc, s[32:33]
    s_nop 1
    v_cndmask_b32 v6, 0, v6, vcc
    """)
    for i in range(24):
        k.e(f"v_mov_b32 v{VV+i}, v6")
    k.e(f"""
    s_lshl_b32 s32, s22, 10
    s_add_u32 s32, s32, s24
    s_add_u32 s32, s32, {QF}
    s_lshl_b32 s33, s23, 10
    s_add_u32 s33, s33, s24
    s_add_u32 s33, s33, {QF}
    s_add_u32 s34, s24, {KF}
    s_lshl_b32 s35, s22, 8
    s_add_u32 s35, s35, s25
    s_add_u32 s35, s35, {QL}
    s_lshl_b32 s36, s23, 8
    s_add_u32 s36, s36, s25
    s_add_u32 s36, s36, {QL}
    s_add_u32 s37, s25, {KL}
    """)
    k.vm(f"buffer_load_dwordx4 {r(Q1,4)}, v1, s[8:11], s32 offen")
    k.vm(f"buffer_load_dwordx4 {r(Q1+4,4)}, v1, s[8:11], s33 offen")
    k.vm(f"buffer_load_dwordx4 {r(PP,4)}, v1, s[8:11], s34 offen")
    k.e(f"v_mov_b32 v{PP+4}, 0")
    k.e(f"v_mov_b32 v{PP+5}, 0")
    k.e("s_mov_b64 exec, s[28:29]")
    k.vm(f"buffer_load_dword v{Q2}, v4, s[8:11], s35 offen")
    k.vm(f"buffer_load_dword v{Q2+2}, v4, s[8:11], s36 offen")
    k.vm(f"buffer_load_dword v{PP+4}, v4, s[8:11], s37 offen", tag="q")
    k.e("s_mov_b64 exec, -1")
    k.e(f"""
    s_lshl_b32 s41, s18, 15
    s_add_u32 s45, s34, s41
    s_lshl_b32 s41, s18, 13
    s_add_u32 s46, s37, s41
    s_mul_i32 s47, s19, 73728
    s_mul_i32 s41, s18, 36864
    s_add_u32 s47, s47, s41
    s_add_u32 s47, s47, {VF}
    """)

    def load_k(kt):
        b = kt % 3
        k.vm(f"buffer_load_dwordx4 {r(K1+4*b,4)}, v1, s[8:11], s38 offen", tag=("k", kt))
        k.e("s_mov_b64 exec, s[28:29]")
        k.vm(f"buffer_load_dword v{K2+2*b}, v4, s[8:11], s39 offen", tag=("k", kt))
        k.e("s_mov_b64 exec, -1")
        k.e("s_add_u32 s38, s38, 1024")
        k.e("s_add_u32 s39, s39, 256")

    def load_v(kt):
        b = kt % 3
        k.e("s_mov_b64 exec, s[30:31]")
        k.vm(f"buffer_load_dwordx4 {r(VV+8*b,4)}, v5, s[8:11], s40 offen", tag=("v", kt))
        k.vm(f"buffer_load_dwordx4 {r(VV+8*b+4,4)}, v5, s[8:11], s40 offen offset:576", tag=("v", kt))
        k.e("s_mov_b64 exec, -1")
        k.e("s_add_u32 s40, s40, 1152")

    def start_streams():
        k.e("""
        s_mov_b32 s38, s45
        s_mov_b32 s39, s46
        s_mov_b32 s40, s47
        """)
        for kt in range(3):
            load_k(kt)
            load_v(kt)

    start_streams()
    k.wait(vm="q")
    for qt in range(2):
        k.e(f"v_mfma_f32_32x32x16_bf16 {r(SS+16*qt,16)}, {r(PP,4)}, {r(Q1+4*qt,4)}, 0")
        k.e(f"v_mfma_f32_32x32x8_bf16 {r(SS+16*qt,16)}, {r(PP+4,2)}, {r(Q2+2*qt,2)}, {r(SS+16*qt,16)}")
    for qt in range(2):
        s = SS + 16 * qt
        k.e(f"v_max3_f32 v{8+qt}, v{s}, v{s+1}, v{s+2}")
        for i in range(3, 15, 2):
            k.e(f"v_max3_f32 v{8+qt}, v{8+qt}, v{s+i}, v{s+i+1}")
        k.e(f"v_max_f32 v{8+qt}, v{8+qt}, v{s+15}")
    vmq_start = list(k.vmq)
    k.label("La_setmax")
    for qt in range(2):
        k.e(f"""
        v_mov_b32 v{10+qt}, v{8+qt}
        v_permlane32_swap_b32 v{8+qt}, v{10+qt}
        v_max_f32 v{8+qt}, v{8+qt}, v{10+qt}
        """)
        for i in range(16):
            k.e(f"v_sub_f32 v{CM+16*qt+i}, 0, v{8+qt}")

    NU = 64

    def qk(u, part):
        kt, qt = u >> 1, u & 1
        b = kt % 3
        s = r(SS + 16 * (u & 1), 16)
        if part == 0:
            if qt == 0:
                k.wait(vm=("k", kt))
            k.e(f"v_mfma_f32_32x32x16_bf16 {s}, {r(K1+4*b,4)}, {r(Q1+4*qt,4)}, {r(CM+16*qt,16)}")
        else:
            k.e(f"v_mfma_f32_32x32x8_bf16 {s}, {r(K2+2*b,2)}, {r(Q2+2*qt,2)}, {s}")

    def pv(u, part):
        kt, qt = u >> 1, u & 1
        b = kt % 3
        o = r(OO + 16 * qt, 16)
        if part == 0 and qt == 0:
            k.wait(vm=("v", kt))
        c = "0" if (kt == 0 and part == 0) else o
        k.e(f"v_mfma_f32_32x32x16_bf16 {o}, {r(VV+8*b+4*part,4)}, {r(PP+8*(u&1)+4*part,4)}, {c}")

    qk(0, 0)
    qk(0, 1)
    for u in range(NU):
        s = SS + 16 * (u & 1)
        p = PP + 8 * (u & 1)
        ops = []
        for i in range(16):
            ops.append(f"v_exp_f32 v{s+i}, v{s+i}")
            if i >= 3 and i % 2 == 1:
                j = (i - 3) // 2
                ops.append(f"v_cvt_pk_bf16_f32 v{p+j}, v{s+2*j}, v{s+2*j+1}")
        ops.append(f"v_cvt_pk_bf16_f32 v{p+7}, v{s+14}, v{s+15}")
        kt = u >> 1
        if u & 1:
            if kt + 3 < 32:
                load_k(kt + 3)
            if kt >= 1 and kt + 2 < 32:
                load_v(kt + 2)
        ms = []
        if u + 1 < NU:
            ms += [lambda: qk(u + 1, 0), lambda: qk(u + 1, 1)]
        if u >= 1:
            ms += [lambda: pv(u - 1, 0), lambda: pv(u - 1, 1)]
        pos = {0: 0, 5: 1, 11: 2, 17: 3}
        for i, o in enumerate(ops):
            if i in pos and pos[i] < len(ms):
                ms[pos[i]]()
            k.e(o)
    pv(NU - 1, 0)
    pv(NU - 1, 1)
    k.e(f"""
    v_cmp_eq_u32 vcc, 0, v3
    s_mul_i32 s41, s16, 3072
    v_add_u32 v12, s41, v1
    s_xor_b32 s41, s16, 4
    s_mul_i32 s41, s41, 3072
    v_add_u32 v13, s41, v1
    v_cndmask_b32 v8, v{OO+8}, v{OO+10}, vcc
    v_cndmask_b32 v9, v{OO+24}, v{OO+26}, vcc
    v_mov_b32 v10, {hexf(2.0**60)}
    v_cmp_nlt_f32 s[32:33], v8, v10
    v_cmp_nlt_f32 s[34:35], v9, v10
    s_or_b64 s[32:33], s[32:33], s[34:35]
    s_cmp_lg_u64 s[32:33], 0
    s_cselect_b32 s41, 1, 0
    v_mov_b32 v10, s41
    s_lshl_b32 s41, s16, 2
    s_add_u32 s41, s41, {FLAGOFF}
    v_mov_b32 v11, s41
    """)
    for i in range(3):
        k.lg(f"ds_write_b128 v12, {r(OO+16+4*i,4)} offset:{1024*i}")
    k.lg(f"ds_write_b32 v11, v10")
    k.wait_all(vm=False)
    k.e(f"""
    s_barrier
    v_mov_b32 v11, {FLAGOFF}
    """)
    k.lg(f"ds_read_b128 {r(SS,4)}, v11")
    k.lg(f"ds_read_b128 {r(SS+4,4)}, v11 offset:16")
    for i in range(3):
        k.lg(f"ds_read_b128 {r(OO+16+4*i,4)}, v13 offset:{1024*i}")
    k.wait_all(vm=False)
    k.e(f"""
    v_or3_b32 v10, v{SS}, v{SS+1}, v{SS+2}
    v_or3_b32 v10, v10, v{SS+3}, v{SS+4}
    v_or3_b32 v10, v10, v{SS+5}, v{SS+6}
    v_or_b32 v10, v10, v{SS+7}
    v_readfirstlane_b32 s41, v10
    s_andn2_b32 s41, s41, s44
    s_cmp_lg_u32 s41, 0
    s_cbranch_scc1 La_fallback
    """)
    for i in range(11):
        k.e(f"v_add_f32 v{OO+i}, v{OO+i}, v{OO+16+i}")
    k.e(f"""
    v_cndmask_b32 v8, v{OO+8}, v{OO+10}, vcc
    v_rcp_f32 v8, v8
    s_lshl_b32 s41, s22, 1
    s_mul_i32 s41, s41, {18*1024}
    s_add_u32 s41, s41, {OB}
    s_lshr_b32 s42, s19, 1
    s_lshl_b32 s42, s42, 10
    s_and_b32 s43, s19, 1
    s_lshl_b32 s43, s43, 9
    s_add_u32 s42, s42, s43
    s_add_u32 s42, s42, s41
    v_lshrrev_b32 v9, 4, v2
    v_mul_u32_u24 v9, {18*1024}, v9
    v_and_b32 v10, 15, v2
    v_lshl_add_u32 v9, v10, 4, v9
    v_lshl_add_u32 v10, v3, 8, v9
    s_lshr_b32 s43, s19, 2
    s_lshl_b32 s43, s43, 8
    s_add_u32 s41, s41, s43
    s_and_b32 s43, s19, 3
    s_lshl_b32 s43, s43, 2
    s_add_u32 s41, s41, s43
    s_add_u32 s41, s41, {16*1024}
    """)
    for i in range(10):
        k.e(f"v_mul_f32 v{OO+i}, v{OO+i}, v8")
    for i in range(5):
        k.e(f"v_cvt_pk_bf16_f32 v{PP+i}, v{OO+2*i}, v{OO+2*i+1}")
    k.e(f"""
    buffer_store_dwordx4 {r(PP,4)}, v10, s[8:11], s42 offen
    s_mov_b64 exec, s[28:29]
    buffer_store_dword v{PP+4}, v9, s[8:11], s41 offen
    s_endpgm
    """)
    k.label("La_fallback")
    k.e(f"""
    s_mov_b32 s44, 1
    s_mov_b32 s38, s45
    s_mov_b32 s39, s46
    s_mov_b32 s41, 32
    v_mov_b32 v8, 0xff800000
    v_mov_b32 v9, 0xff800000
    """)
    k.label("La_fb_loop")
    k.e(f"""
    buffer_load_dwordx4 {r(K1,4)}, v1, s[8:11], s38 offen
    s_mov_b64 exec, s[28:29]
    buffer_load_dword v{K2}, v4, s[8:11], s39 offen
    s_mov_b64 exec, -1
    s_add_u32 s38, s38, 1024
    s_add_u32 s39, s39, 256
    s_waitcnt vmcnt(0)
    """)
    for qt in range(2):
        k.e(f"v_mfma_f32_32x32x16_bf16 {r(SS+16*qt,16)}, {r(K1,4)}, {r(Q1+4*qt,4)}, 0")
        k.e(f"v_mfma_f32_32x32x8_bf16 {r(SS+16*qt,16)}, {r(K2,2)}, {r(Q2+2*qt,2)}, {r(SS+16*qt,16)}")
    for qt in range(2):
        s = SS + 16 * qt
        for i in range(0, 16, 2):
            k.e(f"v_max3_f32 v{8+qt}, v{8+qt}, v{s+i}, v{s+i+1}")
    k.e(f"""
    s_sub_u32 s41, s41, 1
    s_cmp_lg_u32 s41, 0
    s_cbranch_scc1 La_fb_loop
    s_barrier
    ds_write_b64 v12, v[8:9]
    s_waitcnt lgkmcnt(0)
    s_barrier
    ds_read_b64 v[10:11], v13
    s_waitcnt lgkmcnt(0)
    v_max_f32 v8, v8, v11
    v_max_f32 v9, v9, v10
    s_barrier
    """)
    k.vmq = []
    start_streams()
    assert k.vmq == vmq_start, (k.vmq, vmq_start)
    k.e("s_branch La_setmax")
    k.label("La_end")
    k.e("s_endpgm")
    return k
```

```python
from asmlib import *
from layout import *
from k_prep import ws_srd

GSZ = 36864
CSOFF = 4 * GSZ
LDS_B = CSOFF + 2048
PDW = 4
NB = 6

ACC = 16
WFR = ACC + 72
ACT = WFR + 4 * NB
TMP = ACT + 64


def acc(tt, nt):
    b = ACC + (tt * 9 + nt) * 4
    return f"v[{b}:{b+3}]"


def wfr(f):
    b = WFR + (f % NB) * 4
    return f"v[{b}:{b+3}]"


def act(s, tt):
    b = ACT + ((((s >> 1) & 3) * 2 + (s & 1)) * 2 + tt) * 4
    return f"v[{b}:{b+3}]"


def common_setup(k):
    k.e(f"""
    v_lshrrev_b32 v1, 6, v0
    v_mov_b32 v15, v0
    v_and_b32 v0, 63, v0
    v_readfirstlane_b32 s16, v1
    v_lshlrev_b32 v1, 4, v0
    v_and_b32 v2, 15, v0
    v_lshrrev_b32 v3, 4, v0
    s_and_b32 s17, s16, 3
    s_lshr_b32 s18, s16, 2
    s_mul_i32 s19, s18, 9216
    v_add_u32 v4, s19, v1
    v_add_u32 v5, {GSZ}, v4
    v_add_u32 v6, {2*GSZ}, v4
    v_add_u32 v7, {3*GSZ}, v4
    s_mul_i32 s20, s16, 4608
    s_mul_i32 s21, s16, 2304
    s_mov_b32 s22, -1
    s_mov_b32 s23, 0
    s_mov_b32 s24, 0xffff
    s_mov_b32 s25, 0
    """)


def dma_group(k, G, nsteps, sW):
    full = (2 * G + 1 < nsteps)
    src = G * GSZ
    dst = (G & 3) * GSZ
    sw = 20 if full else 21
    k.e(f"""
    s_add_u32 m0, s{sw}, {dst}
    s_add_u32 s26, s{sW}, s{sw}
    s_add_u32 s26, s26, {src}
    """)
    n = 4 if full else 2
    for i in range(n):
        k.vm(f"buffer_load_dwordx4 v1, s[8:11], s26 offen offset:{1024*i} lds", tag=("dma", G))
    k.e(f"""
    s_add_u32 m0, m0, {1024*n}
    s_add_u32 s26, s26, {1024*n}
    s_mov_b64 exec, s[{22 if full else 24}:{23 if full else 25}]
    """)
    k.vm(f"buffer_load_dwordx4 v1, s[8:11], s26 offen lds", tag=("dma", G))
    k.e("s_mov_b64 exec, -1")


def act_group(k, G, nsteps, sA, sB):
    for s in (2 * G, 2 * G + 1):
        if s >= nsteps:
            continue
        if s % 4 == 0 and s:
            k.e(f"s_add_u32 s{sA}, s{sA}, 4096")
            k.e(f"s_add_u32 s{sB}, s{sB}, 4096")
        k.vm(f"buffer_load_dwordx4 {act(s,0)}, v1, s[8:11], s{sA} offen offset:{1024*(s%4)}", tag=("act", s))
        k.vm(f"buffer_load_dwordx4 {act(s,1)}, v1, s[8:11], s{sB} offen offset:{1024*(s%4)}", tag=("act", s))


def main_loop(k, nsteps, sW, sA, sB, swap, hook=None):
    NG = (nsteps + 1) // 2
    NF = nsteps * 9

    def rd(f):
        s, nt = divmod(f, 9)
        G = s >> 1
        if f % 18 == 0:
            k.wait(vm=("dma", G))
            if hook:
                hook(k, G)
            k.e("s_barrier")
        k.lg(f"ds_read_b128 {wfr(f)}, v{4+(G&3)} offset:{(s&1)*18432 + nt*1024}", tag=("w", f))
        if f % 18 == 0 and G >= 2 and G + 2 < NG:
            dma_group(k, G + 2, nsteps, sW)
            act_group(k, G + 2, nsteps, sA, sB)

    for f in range(PDW):
        rd(f)
    for f in range(NF):
        s, nt = divmod(f, 9)
        if f + PDW < NF:
            rd(f + PDW)
        k.wait(vm=("act", s) if nt == 0 else None, lg=("w", f))
        for tt in range(2):
            c = "0" if s == 0 else acc(tt, nt)
            if swap:
                k.e(f"v_mfma_f32_16x16x32_bf16 {acc(tt,nt)}, {act(s,tt)}, {wfr(f)}, {c}")
            else:
                k.e(f"v_mfma_f32_16x16x32_bf16 {acc(tt,nt)}, {wfr(f)}, {act(s,tt)}, {c}")


def exchange(k):
    k.e(f"""
    s_mul_i32 s26, s16, 9216
    v_add_u32 v8, s26, v1
    s_xor_b32 s26, s16, 4
    s_mul_i32 s26, s26, 9216
    v_add_u32 v9, s26, v1
    s_barrier
    """)
    for nt in range(9):
        k.lg(f"ds_write_b128 v8, {acc(1,nt)} offset:{nt*1024}")
    k.wait_all(vm=False)
    k.e("s_barrier")
    for nt in range(9):
        k.lg(f"ds_read_b128 {acc(1,nt)}, v9 offset:{nt*1024}", tag=("x", nt))
    for nt in range(9):
        k.wait(lg=("x", nt))
        for r in range(4):
            a = ACC + nt * 4 + r
            k.e(f"v_add_f32 v{a}, v{a}, v{a+36}")


def stats_from(k, src, mean, rstd, t):
    k.e(f"""
    v_add_f32 v{src}, v{src}, v{src+2}
    v_add_f32 v{src+4}, v{src+4}, v{src+6}
    v_add_f32 v{src+1}, v{src+1}, v{src+3}
    v_add_f32 v{src+5}, v{src+5}, v{src+7}
    v_add_f32 v{src}, v{src}, v{src+4}
    v_add_f32 v{src+1}, v{src+1}, v{src+5}
    v_mul_f32 v{mean}, {hexf(1.0/576)}, v{src}
    v_mul_f32 v{t}, {hexf(1.0/576)}, v{src+1}
    v_fma_f32 v{t}, -v{mean}, v{mean}, v{t}
    v_max_f32 v{t}, 0, v{t}
    v_add_f32 v{t}, {hexf(1e-5)}, v{t}
    v_rsq_f32 v{rstd}, v{t}
    """)


def hexf(x):
    import struct
    return "0x%08x" % struct.unpack("<I", struct.pack("<f", x))[0]


def gen_ffn2():
    k = Kern("ffn2_kernel", vgpr=184, sgpr=48)
    k.e(f"""
    s_cmp_ge_u32 s2, 256
    s_cbranch_scc1 Lf2_end
    s_load_dwordx2 s[4:5], s[0:1], 72
    """)
    common_setup(k)
    k.e(f"""
    s_and_b32 s30, s2, 3
    s_bfe_u32 s31, s2, 0x10002
    s_lshl_b32 s31, s31, 3
    s_bfe_u32 s32, s2, 0x30003
    s_add_u32 s31, s31, s32
    s_lshr_b32 s32, s2, 6
    s_lshl_b32 s33, s32, 2
    s_add_u32 s33, s33, s30
    s_mul_i32 s33, s33, {18*18432}
    s_add_u32 s33, s33, {W2P}
    s_lshl_b32 s34, s31, 3
    s_lshl_b32 s35, s17, 1
    s_add_u32 s34, s34, s35
    s_add_u32 s36, s34, s18
    s_xor_b32 s35, s18, 1
    s_add_u32 s37, s34, s35
    s_mul_i32 s35, s30, 36
    s_mul_i32 s38, s18, 18
    s_add_u32 s35, s35, s38
    s_mul_i32 s38, s36, 144
    s_add_u32 s38, s38, s35
    s_lshl_b32 s38, s38, 10
    s_add_u32 s38, s38, {HB}
    s_mul_i32 s39, s37, 144
    s_add_u32 s39, s39, s35
    s_lshl_b32 s39, s39, 10
    s_add_u32 s39, s39, {HB}
    s_waitcnt lgkmcnt(0)
    """)
    ws_srd(k)
    for G in range(4):
        dma_group(k, G, 18, 33)
        act_group(k, G, 18, 38, 39)
    main_loop(k, 18, 33, 38, 39, swap=False)
    exchange(k)
    k.e(f"""
    s_lshl_b32 s40, s30, 7
    s_add_u32 s40, s40, s36
    s_mul_i32 s40, s40, 36
    s_mul_i32 s41, s32, 9
    s_add_u32 s40, s40, s41
    s_lshl_b32 s40, s40, 10
    s_add_u32 s40, s40, {PART}
    """)
    for nt in range(9):
        if nt % 4 == 0 and nt:
            k.e("s_add_u32 s40, s40, 4096")
        k.e(f"buffer_store_dwordx4 {acc(0,nt)}, v1, s[8:11], s40 offen offset:{1024*(nt%4)}")
    k.label("Lf2_end")
    k.e("s_endpgm")
    return k


QSCALE = (18 ** -0.5) * 1.4426950408889634


def gen_qkv():
    k = Kern("qkv_kernel", vgpr=232, sgpr=48)
    CSP = TMP
    ST = TMP + 20
    k.e(f"""
    s_cmp_ge_u32 s2, 192
    s_cbranch_scc1 Lq_end
    s_load_dwordx2 s[4:5], s[0:1], 72
    """)
    common_setup(k)
    k.e(f"""
    s_bfe_u32 s31, s2, 0x20001
    s_lshl_b32 s31, s31, 2
    s_bfe_u32 s32, s2, 0x20003
    s_add_u32 s31, s31, s32
    s_and_b32 s32, s2, 1
    s_mul_i32 s32, s32, 6
    s_lshr_b32 s33, s2, 5
    s_add_u32 s32, s32, s33
    s_mul_i32 s33, s32, {9*18432}
    s_add_u32 s33, s33, {WQKVP}
    s_lshl_b32 s34, s31, 3
    s_lshl_b32 s35, s17, 1
    s_add_u32 s34, s34, s35
    s_add_u32 s36, s34, s18
    s_xor_b32 s35, s18, 1
    s_add_u32 s37, s34, s35
    s_mul_i32 s35, s18, 9
    s_mul_i32 s38, s36, 18
    s_add_u32 s38, s38, s35
    s_lshl_b32 s38, s38, 10
    s_add_u32 s38, s38, {XA}
    s_mul_i32 s39, s37, 18
    s_add_u32 s39, s39, s35
    s_lshl_b32 s39, s39, 10
    s_add_u32 s39, s39, {XA}
    s_mul_i32 s40, s32, 576
    s_add_u32 s40, s40, {CSQ}
    v_lshlrev_b32 v10, 2, v15
    v_add_u32 v11, s40, v10
    v_mov_b32 v12, {OOB}
    v_cmp_gt_u32 vcc, 144, v15
    v_add_u32 v10, {CSOFF}, v10
    v_cndmask_b32 v11, v12, v11, vcc
    s_lshl_b32 s41, s36, 9
    s_add_u32 s41, s41, {STA}
    s_waitcnt lgkmcnt(0)
    """)
    ws_srd(k)
    dma_group(k, 0, 9, 33)
    act_group(k, 0, 9, 38, 39)
    k.e("s_mov_b32 s42, 0")
    for kb in range(18):
        k.vm(f"buffer_load_dword v{CSP+kb}, v11, s[8:11], s42 offen", tag="cs")
        k.e(f"s_add_u32 s42, s42, {12*144*4}")
    for G in range(1, 4):
        dma_group(k, G, 9, 33)
        act_group(k, G, 9, 38, 39)

    def hook(k, G):
        if G == 1:
            k.wait(vm="cs")
            for i in range(1, 18):
                k.e(f"v_add_f32 v{CSP}, v{CSP}, v{CSP+i}")
            k.lg(f"ds_write_b32 v10, v{CSP}")

    vmq0, lgq0 = list(k.vmq), list(k.lgq)
    k.e(f"""
    s_cmp_ge_u32 s32, 8
    s_cbranch_scc1 Lq_v
    """)
    k.e(f"v_lshlrev_b32 v12, 5, v2")
    k.vm(f"buffer_load_dwordx4 v[{ST}:{ST+3}], v12, s[8:11], s41 offen", tag="st")
    k.vm(f"buffer_load_dwordx4 v[{ST+4}:{ST+7}], v12, s[8:11], s41 offen offset:16", tag="st")
    main_loop(k, 9, 33, 38, 39, swap=False, hook=hook)
    k.wait(vm="st")
    stats_from(k, ST, 12, 13, 14)
    exchange(k)
    k.e(f"""
    s_mov_b32 s42, {hexf(QSCALE)}
    s_cmp_lt_u32 s32, 4
    s_cselect_b32 s42, s42, 1.0
    s_cselect_b32 s43, {QF}, 0
    s_cselect_b32 s44, {QL}, 0
    s_cselect_b32 s45, 0, {KF}
    s_cselect_b32 s46, 0, {KL}
    s_add_u32 s43, s43, s45
    s_add_u32 s44, s44, s46
    v_mul_f32 v13, s42, v13
    v_lshlrev_b32 v8, 4, v3
    v_add_u32 v8, {CSOFF}, v8
    """)
    for nt in range(9):
        k.lg(f"ds_read_b128 {acc(1,nt)}, v8 offset:{nt*64}", tag=("cs", nt))
    k.e(f"""
    s_and_b32 s45, s32, 3
    s_lshl_b32 s46, s45, 19
    s_add_u32 s43, s43, s46
    s_lshr_b32 s46, s36, 1
    s_lshl_b32 s46, s46, 10
    s_add_u32 s43, s43, s46
    s_and_b32 s46, s36, 1
    s_lshl_b32 s46, s46, 8
    s_add_u32 s43, s43, s46
    v_lshrrev_b32 v9, 1, v3
    v_lshlrev_b32 v9, 16, v9
    v_and_b32 v10, 1, v3
    v_lshl_add_u32 v9, v10, 9, v9
    v_lshl_add_u32 v9, v2, 4, v9
    s_lshl_b32 s46, s45, 16
    s_add_u32 s44, s44, s46
    s_lshl_b32 s46, s36, 7
    s_add_u32 s44, s44, s46
    v_lshlrev_b32 v10, 14, v3
    v_lshl_add_u32 v10, v2, 3, v10
    """)
    for nt in range(9):
        k.wait(lg=("cs", nt))
        for r in range(4):
            a = ACC + nt * 4 + r
            k.e(f"v_fma_f32 v{a}, -v12, v{a+36}, v{a}")
            k.e(f"v_mul_f32 v{a}, v13, v{a}")
        a = ACC + nt * 4
        d = WFR + (nt >> 1) * 4 + (nt & 1) * 2
        k.e(f"v_cvt_pk_bf16_f32 v{d}, v{a}, v{a+1}")
        k.e(f"v_cvt_pk_bf16_f32 v{d+1}, v{a+2}, v{a+3}")
        if nt & 1:
            k.e(f"buffer_store_dwordx4 v[{d-2}:{d+1}], v9, s[8:11], s43 offen")
            k.e(f"s_add_u32 s43, s43, {2*65536}")
        if nt == 8:
            k.e(f"buffer_store_dwordx2 v[{d}:{d+1}], v10, s[8:11], s44 offen")
    k.e("s_endpgm")
    k.label("Lq_v")
    k.vmq, k.lgq = vmq0, lgq0
    k.e(f"v_lshlrev_b32 v12, 7, v3")
    for i in range(8):
        k.vm(f"buffer_load_dwordx4 v[{ST+4*i}:{ST+4*i+3}], v12, s[8:11], s41 offen offset:{16*i}", tag="st")
    main_loop(k, 9, 33, 38, 39, swap=True, hook=hook)
    k.wait(vm="st")
    MEAN, RSTD = CSP, CSP + 4
    for r in range(4):
        stats_from(k, ST + 8 * r, MEAN + r, RSTD + r, 14)
    exchange(k)
    k.e(f"""
    v_lshlrev_b32 v8, 2, v2
    v_add_u32 v8, {CSOFF}, v8
    """)
    for nt in range(9):
        k.lg(f"ds_read_b32 v{ACC+36+nt}, v8 offset:{nt*64}", tag=("cs", nt))
    k.e(f"""
    s_sub_u32 s45, s32, 8
    s_mul_i32 s43, s45, {8*73728}
    s_mul_i32 s46, s36, 576
    s_add_u32 s43, s43, s46
    s_add_u32 s43, s43, {VF}
    s_mov_b32 s44, s43
    v_and_b32 v9, 1, v3
    v_mul_u32_u24 v9, 288, v9
    v_lshrrev_b32 v10, 1, v3
    v_lshl_add_u32 v9, v10, 3, v9
    v_lshrrev_b32 v10, 1, v2
    v_mul_u32_u24 v10, 73728, v10
    v_and_b32 v11, 1, v2
    v_lshl_add_u32 v10, v11, 4, v10
    v_add_u32 v10, 256, v10
    v_add_u32 v10, v10, v9
    v_lshl_add_u32 v9, v2, 4, v9
    """)
    for nt in range(9):
        k.wait(lg=("cs", nt))
        for r in range(4):
            a = ACC + nt * 4 + r
            k.e(f"v_fma_f32 v{a}, -v{MEAN+r}, v{ACC+36+nt}, v{a}")
            k.e(f"v_mul_f32 v{a}, v{RSTD+r}, v{a}")
        a = ACC + nt * 4
        d = WFR + nt * 2
        k.e(f"v_cvt_pk_bf16_f32 v{d}, v{a}, v{a+1}")
        k.e(f"v_cvt_pk_bf16_f32 v{d+1}, v{a+2}, v{a+3}")
        if nt < 8:
            k.e(f"buffer_store_dwordx2 v[{d}:{d+1}], v9, s[8:11], s43 offen")
            k.e(f"s_add_u32 s43, s43, 73728")
        else:
            k.e(f"buffer_store_dwordx2 v[{d}:{d+1}], v10, s[8:11], s44 offen")
    k.label("Lq_end")
    k.e("s_endpgm")
    return k
```

```python
from asmlib import *
from layout import *
from k_prep import ws_srd
from k_gemmb import hexf, stats_from


def r(b, n):
    return f"v[{b}:{b+n-1}]"


def resid_round(k, a, x, d, t, s_sum, s_sq, first):
    k.e(f"""
    v_cvt_pk_bf16_f32 v{d}, v{a}, v{a+1}
    v_cvt_pk_bf16_f32 v{d+1}, v{a+2}, v{a+3}
    v_lshlrev_b32 v{a}, 16, v{d}
    v_and_b32 v{a+1}, 0xffff0000, v{d}
    v_lshlrev_b32 v{a+2}, 16, v{d+1}
    v_and_b32 v{a+3}, 0xffff0000, v{d+1}
    v_lshlrev_b32 v{t}, 16, v{x}
    v_and_b32 v{t+1}, 0xffff0000, v{x}
    v_lshlrev_b32 v{t+2}, 16, v{x+1}
    v_and_b32 v{t+3}, 0xffff0000, v{x+1}
    v_add_f32 v{a}, v{a}, v{t}
    v_add_f32 v{a+1}, v{a+1}, v{t+1}
    v_add_f32 v{a+2}, v{a+2}, v{t+2}
    v_add_f32 v{a+3}, v{a+3}, v{t+3}
    v_cvt_pk_bf16_f32 v{d}, v{a}, v{a+1}
    v_cvt_pk_bf16_f32 v{d+1}, v{a+2}, v{a+3}
    """)
    if s_sum is not None:
        if first:
            k.e(f"v_mov_b32 v{s_sum}, 0")
            k.e(f"v_mov_b32 v{s_sq}, 0")
        k.e(f"""
        v_dot2c_f32_bf16 v{s_sum}, v{d}, v14
        v_dot2c_f32_bf16 v{s_sq}, v{d}, v{d}
        v_dot2c_f32_bf16 v{s_sum}, v{d+1}, v14
        v_dot2c_f32_bf16 v{s_sq}, v{d+1}, v{d+1}
        """)


LDS_WO = 36864 + 64 * 144


def gen_wo():
    k = Kern("wo_kernel", vgpr=136, sgpr=48)
    WF = 16
    OF = 88
    AC = 112
    XR = 120
    k.e(f"""
    s_cmp_ge_u32 s2, 256
    s_cbranch_scc1 Lw_end
    s_load_dwordx2 s[4:5], s[0:1], 72
    v_lshrrev_b32 v1, 6, v0
    v_mov_b32 v15, v0
    v_and_b32 v0, 63, v0
    v_readfirstlane_b32 s16, v1
    v_lshlrev_b32 v1, 4, v0
    v_and_b32 v2, 15, v0
    v_lshrrev_b32 v3, 4, v0
    v_mov_b32 v14, 0x3f803f80
    s_bfe_u32 s17, s2, 0x20001
    s_lshl_b32 s17, s17, 4
    s_bfe_u32 s18, s2, 0x40003
    s_add_u32 s17, s17, s18
    s_and_b32 s18, s2, 1
    s_lshl_b32 s18, s18, 1
    s_lshr_b32 s19, s2, 7
    s_add_u32 s18, s18, s19
    s_mul_i32 s19, s18, 9
    s_add_u32 s19, s19, s16
    s_mul_i32 s20, s17, 36864
    s_lshl_b32 s21, s16, 12
    s_mov_b32 m0, s21
    s_add_u32 s22, s20, s21
    s_add_u32 s22, s22, {OB}
    s_mul_i32 s23, s19, {18*1024}
    s_add_u32 s23, s23, {WOP}
    s_lshr_b32 s24, s19, 1
    s_lshl_b32 s24, s24, 10
    s_and_b32 s25, s19, 1
    s_lshl_b32 s25, s25, 9
    s_add_u32 s24, s24, s25
    s_add_u32 s24, s24, s20
    v_lshrrev_b32 v4, 1, v3
    v_lshlrev_b32 v4, 8, v4
    v_lshl_add_u32 v4, v2, 4, v4
    v_and_b32 v5, 1, v3
    v_lshl_add_u32 v4, v5, 3, v4
    s_add_u32 s25, s24, {XA}
    s_add_u32 s26, s25, 18432
    s_add_u32 s27, s24, {XB}
    s_add_u32 s28, s27, 18432
    s_waitcnt lgkmcnt(0)
    """)
    ws_srd(k)
    for i in range(4):
        k.vm(f"buffer_load_dwordx4 v1, s[8:11], s22 offen offset:{1024*i} lds", tag="dma")
    for kb in range(18):
        if kb % 4 == 0 and kb:
            k.e("s_add_u32 s23, s23, 4096")
        k.vm(f"buffer_load_dwordx4 {r(WF+4*kb,4)}, v1, s[8:11], s23 offen offset:{1024*(kb%4)}", tag=("w", kb))
    k.vm(f"buffer_load_dwordx2 {r(XR,2)}, v4, s[8:11], s25 offen", tag="x")
    k.vm(f"buffer_load_dwordx2 {r(XR+2,2)}, v4, s[8:11], s26 offen", tag="x")
    k.wait(vm="dma")
    k.e("s_barrier")

    def rd(f):
        kb, tt = f >> 1, f & 1
        k.lg(f"ds_read_b128 {r(OF+4*(f%6),4)}, v1 offset:{tt*18432 + kb*1024}", tag=("o", f))

    for f in range(4):
        rd(f)
    for f in range(36):
        kb, tt = f >> 1, f & 1
        if f + 4 < 36:
            rd(f + 4)
        k.wait(vm=("w", kb), lg=("o", f))
        c = "0" if kb == 0 else r(AC + 4 * tt, 4)
        k.e(f"v_mfma_f32_16x16x32_bf16 {r(AC+4*tt,4)}, {r(WF+4*kb,4)}, {r(OF+4*(f%6),4)}, {c}")
    k.wait(vm="x")
    k.e(f"""
    s_lshl_b32 s29, s16, 4
    s_add_u32 s29, s29, 36864
    v_mul_u32_u24 v6, 288, v2
    v_lshl_add_u32 v6, v3, 2, v6
    v_add_u32 v6, s29, v6
    """)
    for tt in range(2):
        resid_round(k, AC + 4 * tt, XR + 2 * tt, 124 + 2 * tt, 128, 8 + 2 * tt, 9 + 2 * tt, True)
        k.e(f"buffer_store_dwordx2 {r(124+2*tt,2)}, v4, s[8:11], s{27+tt} offen")
    k.e("s_nop 2")
    for tt in range(2):
        k.lg(f"ds_write_b32 v6, v{8+2*tt} offset:{tt*16*288}")
        k.lg(f"ds_write_b32 v6, v{9+2*tt} offset:{tt*16*288+144}")
    k.wait_all(vm=False)
    k.e(f"""
    s_barrier
    s_cmp_lg_u32 s16, 0
    s_cbranch_scc1 Lw_end
    v_mul_u32_u24 v6, 144, v0
    """)
    for i in range(9):
        k.lg(f"ds_read_b128 {r(WF+4*i,4)}, v6 offset:{36864+16*i}")
    k.e(f"""
    s_lshl_b32 s29, s17, 10
    s_lshl_b32 s30, s18, 3
    s_add_u32 s29, s29, s30
    s_add_u32 s29, s29, {STB}
    v_lshrrev_b32 v7, 1, v0
    v_lshlrev_b32 v7, 5, v7
    v_and_b32 v5, 1, v0
    v_lshl_add_u32 v7, v5, 2, v7
    """)
    k.wait_all(vm=False)
    for i in range(1, 36):
        k.e(f"v_add_f32 v{WF}, v{WF}, v{WF+i}")
    k.e(f"buffer_store_dword v{WF}, v7, s[8:11], s29 offen")
    k.label("Lw_end")
    k.e("s_endpgm")
    return k


STG = 36864
F1_CS = 4 * STG
LDS_F1 = F1_CS + 2048


def gen_ffn1():
    k = Kern("ffn1_kernel", vgpr=248, sgpr=48)
    XF = 16
    AC = XF + 144
    WF = AC + 32
    CV = WF + 24
    TM = CV + 8
    PDW, NB = 4, 6
    NM = 8

    def xf(tt, kb):
        return r(XF + (tt * 18 + kb) * 4, 4)

    def ac(st, tt, mt):
        return AC + ((st * 2 + tt) * 2 + mt) * 4

    k.e(f"""
    s_cmp_ge_u32 s2, 256
    s_cbranch_scc1 Lf1_end
    s_load_dwordx2 s[4:5], s[0:1], 72
    v_lshrrev_b32 v1, 6, v0
    v_mov_b32 v15, v0
    v_and_b32 v0, 63, v0
    v_readfirstlane_b32 s16, v1
    v_lshlrev_b32 v1, 4, v0
    v_and_b32 v2, 15, v0
    v_lshrrev_b32 v3, 4, v0
    v_mov_b32 v4, v1
    v_add_u32 v5, {STG}, v1
    v_add_u32 v6, {2*STG}, v1
    v_add_u32 v7, {3*STG}, v1
    s_and_b32 s17, s2, 7
    s_lshl_b32 s17, s17, 2
    s_bfe_u32 s18, s2, 0x20003
    s_add_u32 s17, s17, s18
    s_lshr_b32 s18, s2, 5
    s_lshl_b32 s19, s18, 4
    s_lshl_b32 s20, s16, 1
    s_add_u32 s19, s19, s20
    s_mul_i32 s20, s16, 4608
    s_mul_i32 s21, s17, {9*STG}
    s_add_u32 s21, s21, s20
    s_add_u32 s21, s21, {W13P}
    s_mov_b32 s22, -1
    s_mov_b32 s23, 0
    s_mul_i32 s24, s19, {18*1024}
    s_add_u32 s24, s24, {XB}
    s_add_u32 s25, s24, {18*1024}
    s_lshl_b32 s27, s19, 9
    s_add_u32 s27, s27, {STB}
    s_mul_i32 s28, s17, {9*128}
    s_add_u32 s28, s28, {CS13}
    v_lshlrev_b32 v14, 2, v15
    v_add_u32 v9, s28, v14
    v_mov_b32 v8, {OOB}
    v_cmp_gt_u32 vcc, 288, v15
    v_add_u32 v14, {F1_CS}, v14
    v_cndmask_b32 v9, v8, v9, vcc
    v_lshlrev_b32 v8, 5, v2
    s_mul_i32 s30, s19, {144*1024}
    s_add_u32 s30, s30, {HB}
    s_mul_i32 s31, s17, 9
    v_lshlrev_b32 v15, 4, v3
    v_add_u32 v15, {F1_CS}, v15
    s_waitcnt lgkmcnt(0)
    """)
    ws_srd(k)

    def dma(t):
        k.e(f"""
        s_add_u32 m0, s20, {(t&3)*STG}
        s_add_u32 s26, s21, {t*STG}
        """)
        for i in range(4):
            k.vm(f"buffer_load_dwordx4 v1, s[8:11], s26 offen offset:{1024*i} lds", tag=("dma", t))
        k.e(f"""
        s_add_u32 m0, m0, 4096
        s_add_u32 s26, s26, 4096
        s_mov_b64 exec, s[22:23]
        """)
        k.vm(f"buffer_load_dwordx4 v1, s[8:11], s26 offen lds", tag=("dma", t))
        k.e("s_mov_b64 exec, -1")

    CSP = AC
    STR = WF
    k.e("s_mov_b32 s29, 0")
    for kb in range(18):
        k.vm(f"buffer_load_dword v{CSP+kb}, v9, s[8:11], s29 offen", tag="cs")
        k.e(f"s_add_u32 s29, s29, {288*128}")
    for tt in range(2):
        k.vm(f"buffer_load_dwordx4 {r(STR+8*tt,4)}, v8, s[8:11], s27 offen offset:{512*tt}", tag="cs")
        k.vm(f"buffer_load_dwordx4 {r(STR+8*tt+4,4)}, v8, s[8:11], s27 offen offset:{512*tt+16}", tag="cs")
    dma(0)
    for kb in range(18):
        if kb % 4 == 0 and kb:
            k.e("s_add_u32 s24, s24, 4096")
            k.e("s_add_u32 s25, s25, 4096")
        k.vm(f"buffer_load_dwordx4 {xf(0,kb)}, v1, s[8:11], s24 offen offset:{1024*(kb%4)}", tag=("x", kb))
        k.vm(f"buffer_load_dwordx4 {xf(1,kb)}, v1, s[8:11], s25 offen offset:{1024*(kb%4)}", tag=("x", kb))
    k.wait(vm="cs")
    for i in range(1, 18):
        k.e(f"v_add_f32 v{CSP}, v{CSP}, v{CSP+i}")
    k.lg(f"ds_write_b32 v14, v{CSP}")
    for tt in range(2):
        stats_from(k, STR + 8 * tt, NM + tt, 10 + tt, 12 + tt)
        k.e(f"""
        v_sub_f32 v{NM+tt}, 0, v{NM+tt}
        v_mul_f32 v{10+tt}, {hexf(-1.4426950408889634)}, v{10+tt}
        """)
    for t in range(1, 4):
        dma(t)

    def init_ops(t):
        ops = [("lg", f"ds_read_b128 {r(CV,4)}, v15 offset:{t*128}", ("cv", t)),
               ("lg", f"ds_read_b128 {r(CV+4,4)}, v15 offset:{t*128+64}", ("cv", t)),
               ("nop",), ("nop",), ("nop",), ("nop",),
               ("wait", ("cv", t))]
        for tt in range(2):
            for mt in range(2):
                for i in range(4):
                    ops.append(("e", f"v_mul_f32 v{ac(t&1,tt,mt)+i}, v{NM+tt}, v{CV+4*mt+i}"))
        return ops

    def epi_ops(t):
        ops = [("e", f"s_add_u32 s32, s31, {t}"), ("e", "s_lshr_b32 s33, s32, 1"), ("e", "s_lshl_b32 s33, s33, 10"),
               ("e", "s_and_b32 s32, s32, 1"), ("e", "s_lshl_b32 s32, s32, 3"), ("e", "s_add_u32 s33, s33, s32"),
               ("e", "s_add_u32 s33, s33, s30"), ("e", f"s_add_u32 s34, s33, {144*1024}")]
        for tt in range(2):
            g, u = ac(t & 1, tt, 0), ac(t & 1, tt, 1)
            T = TM + 8 * tt
            for i in range(4):
                ops.append(("e", f"v_mul_f32 v{T+i}, v{10+tt}, v{g+i}"))
            for i in range(4):
                ops.append(("e", f"v_exp_f32 v{T+i}, v{T+i}"))
                ops.append(("e", f"v_mul_f32 v{g+i}, v{g+i}, v{u+i}"))
            for i in range(4):
                ops.append(("e", f"v_fma_f32 v{T+i}, v{T+i}, v{12+tt}, v{12+tt}"))
            for i in range(4):
                ops.append(("e", f"v_rcp_f32 v{T+i}, v{T+i}"))
            ops.append(("nop",))
            for i in range(4):
                ops.append(("e", f"v_mul_f32 v{g+i}, v{g+i}, v{T+i}"))
            ops.append(("e", f"v_cvt_pk_bf16_f32 v{T+4}, v{g}, v{g+1}"))
            ops.append(("e", f"v_cvt_pk_bf16_f32 v{T+5}, v{g+2}, v{g+3}"))
            ops.append(("vm", f"buffer_store_dwordx2 {r(T+4,2)}, v1, s[8:11], s{33+tt} offen"))
        return ops

    def run_op(o):
        if o[0] == "e":
            k.e(o[1])
        elif o[0] == "lg":
            k.lg(o[1], tag=o[2])
        elif o[0] == "vm":
            k.vm(o[1])
        elif o[0] == "wait":
            k.wait(lg=o[1])

    NF = 9 * 36

    def rd(F):
        t, f = divmod(F, 36)
        if f == 0:
            if t == 0:
                k.wait(vm=("dma", t), lg=None)
                k.wait_all(vm=False)
            else:
                k.wait(vm=("dma", t))
            k.e("s_barrier")
        k.lg(f"ds_read_b128 {r(WF+4*(F%NB),4)}, v{4+(t&3)} offset:{f*1024}", tag=("w", F))
        if f == 0 and t >= 2 and t + 2 < 9:
            dma(t + 2)

    for F in range(PDW):
        rd(F)
    for o in init_ops(0):
        run_op(o)
    for t in range(9):
        fill = []
        if t >= 1:
            fill += [("nop",)] * 4 + epi_ops(t - 1)
        if t + 1 < 9:
            fill += init_ops(t + 1)
        nfill = len(fill)
        done = 0
        for f in range(36):
            F = t * 36 + f
            kb, mt = f >> 1, f & 1
            if F + PDW < NF:
                rd(F + PDW)
            k.wait(vm=("x", kb) if t == 0 else None, lg=("w", F))
            for tt in range(2):
                a = r(ac(t & 1, tt, mt), 4)
                k.e(f"v_mfma_f32_16x16x32_bf16 {a}, {r(WF+4*(F%NB),4)}, {xf(tt,kb)}, {a}")
                want = min(nfill, ((2 * f + tt + 1) * nfill + 67) // 68)
                while done < want:
                    run_op(fill[done])
                    done += 1
        assert done == nfill
    for o in epi_ops(8):
        run_op(o)
    k.label("Lf1_end")
    k.e("s_endpgm")
    return k


def gen_red(final):
    name = "redf_kernel" if final else "red_kernel"
    L = "Lrf_" if final else "Lr_"
    k = Kern(name, vgpr=200, sgpr=48)
    PB = 16
    XR = PB + 144
    k.e(f"""
    s_cmp_ge_u32 s2, 256
    s_cbranch_scc1 {L}end
    s_load_dwordx2 s[4:5], s[0:1], 72
    s_load_dwordx2 s[6:7], s[0:1], 56
    v_lshrrev_b32 v1, 6, v0
    v_and_b32 v0, 63, v0
    v_readfirstlane_b32 s16, v1
    v_lshlrev_b32 v1, 4, v0
    v_and_b32 v2, 15, v0
    v_lshrrev_b32 v3, 4, v0
    v_mov_b32 v14, 0x3f803f80
    s_lshl_b32 s17, s2, 1
    s_add_u32 s17, s17, s16
    s_lshr_b32 s18, s17, 2
    s_and_b32 s19, s17, 3
    s_mul_i32 s20, s17, 9216
    s_add_u32 s20, s20, {PART}
    v_lshrrev_b32 v4, 1, v3
    v_lshlrev_b32 v4, 8, v4
    v_lshl_add_u32 v4, v2, 4, v4
    v_and_b32 v5, 1, v3
    v_lshl_add_u32 v4, v5, 3, v4
    s_mul_i32 s21, s17, 4608
    s_add_u32 s22, s21, {XB}
    s_add_u32 s23, s21, {XA}
    s_waitcnt lgkmcnt(0)
    """)
    ws_srd(k)
    for ks in range(4):
        k.e(f"s_add_u32 s{24+ks}, s20, {ks*128*36*1024}")
    for nt in range(9):
        if nt % 4 == 0 and nt:
            for ks in range(4):
                k.e(f"s_add_u32 s{24+ks}, s{24+ks}, 4096")
        for ks in range(4):
            k.vm(f"buffer_load_dwordx4 {r(PB+(nt*4+ks)*4,4)}, v1, s[8:11], s{24+ks} offen offset:{1024*(nt%4)}", tag=("p", nt))
        if nt == 8:
            k.e("s_add_u32 s22, s22, 4096")
        k.vm(f"buffer_load_dwordx2 {r(XR+2*nt,2)}, v4, s[8:11], s22 offen offset:{512*(nt%8)}", tag=("p", nt))
    if final:
        k.e(f"""
        s_mov_b32 s12, s6
        s_mov_b32 s13, s7
        s_mov_b32 s14, {2048*576*2}
        s_mov_b32 s15, 0x20000
        v_mul_u32_u24 v5, 1152, v2
        v_lshl_add_u32 v5, v3, 3, v5
        s_mul_i32 s28, s18, {16*1152}
        s_mul_i32 s29, s19, 288
        s_add_u32 s28, s28, s29
        """)
    for nt in range(9):
        k.wait(vm=("p", nt))
        b = PB + nt * 16
        for i in range(4):
            k.e(f"v_add_f32 v{b+i}, v{b+i}, v{b+4+i}")
            k.e(f"v_add_f32 v{b+8+i}, v{b+8+i}, v{b+12+i}")
        for i in range(4):
            k.e(f"v_add_f32 v{b+i}, v{b+i}, v{b+8+i}")
        resid_round(k, b, XR + 2 * nt, b + 4, b + 8, None if final else 8, 9, nt == 0)
        if final:
            k.vm(f"buffer_store_dwordx2 {r(b+4,2)}, v5, s[12:15], s28 offen offset:{32*nt}")
        else:
            if nt == 8:
                k.e("s_add_u32 s23, s23, 4096")
            k.vm(f"buffer_store_dwordx2 {r(b+4,2)}, v4, s[8:11], s23 offen offset:{512*(nt%8)}")
    if not final:
        k.e(f"""
        s_nop 3
        v_mov_b32 v10, v8
        v_mov_b32 v11, v9
        v_permlane32_swap_b32 v8, v10
        v_permlane32_swap_b32 v9, v11
        v_add_f32 v8, v8, v10
        v_add_f32 v9, v9, v11
        v_mov_b32 v10, v8
        v_mov_b32 v11, v9
        v_permlane16_swap_b32 v8, v10
        v_permlane16_swap_b32 v9, v11
        v_add_f32 v8, v8, v10
        v_add_f32 v9, v9, v11
        s_lshl_b32 s28, s18, 9
        s_lshl_b32 s29, s19, 3
        s_add_u32 s28, s28, s29
        s_add_u32 s28, s28, {STA}
        v_lshlrev_b32 v5, 5, v2
        s_mov_b64 exec, 0xffff
        buffer_store_dwordx2 v[8:9], v5, s[8:11], s28 offen
        """)
    k.label(L + "end")
    k.e("s_endpgm")
    return k
```

```python
from asmlib import *
from layout import *

N_W13 = 648
N_W2 = 720
N_QKV = 252
N_WO = 90
N_X = 128
T_QKV = 0
T_X = T_QKV + N_QKV
T_WO = T_X + N_X
T_W1 = T_WO + N_WO
T_W3 = T_W1 + N_W13
T_W2 = T_W3 + N_W13
T_END = T_W2 + N_W2
PREP_WGS = (T_END + 3) // 4


def ws_srd(k, sptr=4, srd=8):
    k.e(f"""
    s_mov_b32 s{srd}, s{sptr}
    s_mov_b32 s{srd+1}, s{sptr+1}
    s_mov_b32 s{srd+2}, {WS_USED}
    s_mov_b32 s{srd+3}, 0x20000
    """)


def sdiv(k, q, r, x, d, tmp):
    magic = (2 ** 32 + d - 1) // d
    k.e(f"""
    s_mul_hi_u32 s{q}, s{x}, {magic}
    s_mul_i32 s{tmp}, s{q}, {d}
    s_sub_u32 s{r}, s{x}, s{tmp}
    """)


def gen_prep():
    k = Kern("prep_kernel", vgpr=128, sgpr=64)
    P = "Lp_"
    k.e(f"""
    s_load_dwordx16 s[40:55], s[0:1], 0
    s_load_dwordx2 s[4:5], s[0:1], 72
    v_lshrrev_b32 v1, 6, v0
    v_and_b32 v0, 63, v0
    v_readfirstlane_b32 s16, v1
    s_lshl_b32 s17, s2, 2
    s_add_u32 s16, s16, s17
    v_and_b32 v2, 15, v0
    v_lshrrev_b32 v3, 4, v0
    v_lshlrev_b32 v4, 4, v0
    v_mov_b32 v28, 0x3f803f80
    v_mov_b32 v29, 0x3f803f80
    v_mov_b32 v30, 0x3f803f80
    v_mov_b32 v31, 0x3f803f80
    s_mov_b32 s36, 0x05040100
    s_mov_b32 s37, 0x07060302
    s_mov_b32 s15, 0x20000
    s_waitcnt lgkmcnt(0)
    """)
    ws_srd(k)
    k.e(f"""
    s_cmp_ge_u32 s16, {T_END}
    s_cbranch_scc1 {P}end
    s_cmp_lt_u32 s16, {T_X}
    s_cbranch_scc1 {P}qkv
    s_cmp_lt_u32 s16, {T_WO}
    s_cbranch_scc1 {P}x
    s_cmp_lt_u32 s16, {T_W1}
    s_cbranch_scc1 {P}wo
    s_cmp_lt_u32 s16, {T_W2}
    s_cbranch_scc1 {P}w13
    """)

    def natural_cols(k):
        k.e(f"""
        s_lshl_b32 s30, s18, 3
        v_lshrrev_b32 v5, 1, v2
        v_add_u32 v5, s30, v5
        v_and_b32 v6, 1, v2
        v_lshlrev_b32 v6, 7, v6
        v_lshl_add_u32 v6, v3, 8, v6
        s_lshl_b32 s30, s18, 8
        v_lshlrev_b32 v7, 4, v2
        v_add_u32 v7, s30, v7
        """)

    def dst_from_v8(k):
        k.e(f"""
        v_cmp_gt_u32 vcc, 36, v5
        v_mov_b32 v9, {OOB}
        v_cndmask_b32 v12, v9, v8, vcc
        """)
        for c in range(1, 8):
            k.e(f"v_add_u32 v{12+c}, {16*c}, v12")

    k.e(f"s_sub_u32 s16, s16, {T_W2}")
    sdiv(k, 17, 18, 16, 5, 19)
    k.e(f"""
    s_mov_b32 s12, s52
    s_mov_b32 s13, s53
    s_mov_b32 s14, {4608*576*2}
    """)
    for j in range(8):
        k.e(f"s_mov_b32 s{20+j}, {(8*(j&3) + (j>>2))*1152}")
    natural_cols(k)
    k.e(f"""
    s_lshr_b32 s30, s17, 2
    s_lshl_b32 s30, s30, 7
    s_and_b32 s31, s17, 3
    s_lshl_b32 s31, s31, 1
    s_add_u32 s30, s30, s31
    v_lshlrev_b32 v10, 5, v3
    v_add_u32 v10, s30, v10
    v_mul_u32_u24 v10, 1152, v10
    v_add_u32 v10, v10, v7
    """)
    sdiv(k, 30, 31, 17, 36, 19)
    sdiv(k, 32, 33, 31, 18, 19)
    k.e(f"""
    s_mul_i32 s30, s30, 18
    s_add_u32 s30, s30, s33
    s_lshl_b32 s30, s30, 1
    s_add_u32 s30, s30, s32
    s_mul_i32 s30, s30, 9216
    s_add_u32 s30, s30, {W2P}
    v_mul_u32_u24 v8, 57, v5
    v_lshrrev_b32 v8, 9, v8
    v_mul_u32_u24 v9, 9, v8
    v_sub_u32 v9, v5, v9
    v_mul_u32_u24 v8, {4*18*2*9}, v8
    v_add_u32 v8, v8, v9
    v_lshl_add_u32 v8, v8, 10, v6
    v_add_u32 v8, s30, v8
    """)
    dst_from_v8(k)
    k.e(f"""
    s_mov_b32 s38, 0
    s_branch {P}core
    """)

    k.label(P + "wo")
    k.e(f"s_sub_u32 s16, s16, {T_WO}")
    sdiv(k, 17, 18, 16, 5, 19)
    k.e(f"""
    s_mov_b32 s12, s44
    s_mov_b32 s13, s45
    s_mov_b32 s14, {576*576*2}
    """)
    natural_cols(k)
    k.e(f"""
    s_cmp_ge_u32 s17, 16
    s_cbranch_scc1 {P}wo_tail
    """)
    for j in range(8):
        k.e(f"s_mov_b32 s{20+j}, {j*1152}")
    k.e(f"""
    s_mul_i32 s30, s17, 36
    v_lshrrev_b32 v10, 1, v3
    v_mul_u32_u24 v10, 18, v10
    v_and_b32 v9, 1, v3
    v_lshl_add_u32 v10, v9, 3, v10
    v_add_u32 v10, s30, v10
    s_branch {P}wo_join
    """)
    k.label(P + "wo_tail")
    for j in range(8):
        k.e(f"s_mov_b32 s{20+j}, {(18*(j>>1) + (j&1))*1152}")
    k.e(f"""
    s_sub_u32 s30, s17, 16
    s_mul_i32 s30, s30, 288
    s_add_u32 s30, s30, 16
    v_mul_u32_u24 v10, 72, v3
    v_add_u32 v10, s30, v10
    """)
    k.label(P + "wo_join")
    k.e(f"""
    v_mul_u32_u24 v10, 1152, v10
    v_add_u32 v10, v10, v7
    v_mul_u32_u24 v8, 18, v5
    v_add_u32 v8, s17, v8
    v_lshl_add_u32 v8, v8, 10, v6
    v_add_u32 v8, {WOP}, v8
    """)
    dst_from_v8(k)
    k.e(f"""
    s_mov_b32 s38, 0
    s_branch {P}core
    """)

    k.label(P + "w13")
    k.e(f"""
    s_sub_u32 s16, s16, {T_W1}
    s_mov_b32 s34, 0
    s_mov_b32 s12, s48
    s_mov_b32 s13, s49
    s_cmp_lt_u32 s16, {N_W13}
    s_cbranch_scc1 {P}w13_a
    s_sub_u32 s16, s16, {N_W13}
    s_mov_b32 s34, 1
    s_mov_b32 s12, s50
    s_mov_b32 s13, s51
    """)
    k.label(P + "w13_a")
    sdiv(k, 17, 18, 16, 36, 19)
    k.e(f"s_mov_b32 s14, {4608*576*2}")
    for j in range(8):
        k.e(f"s_mov_b32 s{20+j}, {j*9216}")
    k.e(f"""
    s_lshl_b32 s30, s17, 5
    v_lshl_add_u32 v10, v3, 3, s30
    v_mul_u32_u24 v10, 9216, v10
    s_lshl_b32 s30, s18, 8
    v_lshl_add_u32 v9, v2, 4, s30
    v_add_u32 v10, v10, v9
    s_mul_i32 s30, s18, {8*18}
    s_add_u32 s30, s30, s17
    s_lshl_b32 s30, s30, 1
    s_add_u32 s30, s30, s34
    s_lshl_b32 s30, s30, 10
    s_add_u32 s30, s30, {W13P}
    v_add_u32 v12, s30, v4
    s_mul_i32 s30, s17, 288
    s_lshl_b32 s31, s18, 3
    s_add_u32 s30, s30, s31
    s_lshl_b32 s30, s30, 1
    s_add_u32 s30, s30, s34
    s_lshl_b32 s30, s30, 6
    s_add_u32 s30, s30, {CS13}
    v_lshl_add_u32 v20, v2, 2, s30
    v_mov_b32 v9, {OOB}
    v_cmp_gt_u32 vcc, 16, v0
    v_cndmask_b32 v20, v9, v20, vcc
    """)
    for c in range(1, 8):
        k.e(f"v_add_u32 v{12+c}, {36864*c}, v12")
        k.e(f"v_add_u32 v{20+c}, {128*c}, v20")
    k.e(f"""
    s_mov_b32 s38, 1
    s_branch {P}core
    """)

    k.label(P + "qkv")
    sdiv(k, 17, 18, 16, 14, 19)
    k.e(f"""
    s_mov_b32 s12, s42
    s_mov_b32 s13, s43
    s_mov_b32 s14, {576*1728*2}
    """)
    for j in range(8):
        k.e(f"s_mov_b32 s{20+j}, {j*3456}")
    sdiv(k, 32, 33, 17, 9, 19)
    k.e(f"""
    s_lshl_b32 s30, s17, 5
    v_lshl_add_u32 v10, v3, 3, s30
    v_mul_u32_u24 v10, 3456, v10
    s_lshl_b32 s30, s18, 8
    v_lshl_add_u32 v9, v2, 4, s30
    v_add_u32 v10, v10, v9
    s_lshl_b32 s30, s33, 1
    s_add_u32 s30, s30, s32
    s_mul_i32 s30, s30, 9216
    s_add_u32 s30, s30, {WQKVP}
    v_lshl_add_u32 v11, v3, 8, s30
    s_mul_i32 s31, s17, {12*144*4}
    s_add_u32 s31, s31, {CSQ}
    s_lshl_b32 s35, s18, 7
    v_lshl_add_u32 v5, v2, 3, s35
    v_mov_b32 v40, {OOB}
    """)
    for c in range(8):
        k.e(f"""
        v_add_u32 v6, {c}, v5
        v_mul_u32_u24 v7, 3641, v6
        v_lshrrev_b32 v7, 16, v7
        v_mul_u32_u24 v8, 18, v7
        v_sub_u32 v8, v6, v8
        v_and_b32 v9, 7, v7
        v_lshrrev_b32 v7, 3, v7
        v_lshrrev_b32 v32, 3, v8
        v_lshlrev_b32 v32, 2, v32
        v_and_or_b32 v32, v8, 3, v32
        v_bfe_u32 v33, v8, 2, 1
        v_and_b32 v34, 6, v9
        v_add_u32 v34, v34, v33
        v_lshlrev_b32 v34, 4, v34
        v_and_b32 v35, 1, v9
        v_lshl_add_u32 v34, v35, 3, v34
        v_lshlrev_b32 v35, 4, v9
        v_lshl_add_u32 v35, v33, 3, v35
        v_cmp_gt_u32 vcc, 8, v7
        v_lshl_add_u32 v36, v9, 1, v8
        v_add_u32 v36, 112, v36
        v_cndmask_b32 v34, v35, v34, vcc
        v_add_u32 v34, v34, v32
        v_cmp_gt_u32 vcc, 16, v8
        v_mul_u32_u24 v37, {9*2*9}, v7
        v_mul_u32_u24 v38, 144, v7
        v_cndmask_b32 v34, v36, v34, vcc
        v_lshrrev_b32 v35, 4, v34
        v_add_u32 v37, v37, v35
        v_and_b32 v35, 15, v34
        v_lshlrev_b32 v35, 4, v35
        v_lshl_add_u32 v37, v37, 10, v35
        v_add_u32 v37, v37, v11
        v_add_u32 v38, v38, v34
        v_lshl_add_u32 v38, v38, 2, s31
        v_cmp_gt_u32 vcc, 1728, v6
        v_cmp_gt_u32 s[56:57], 16, v0
        s_nop 1
        v_cndmask_b32 v{12+c}, v40, v37, vcc
        s_and_b64 vcc, vcc, s[56:57]
        s_nop 1
        v_cndmask_b32 v{20+c}, v40, v38, vcc
        """)
    k.e(f"s_mov_b32 s38, 1")

    k.label(P + "core")
    for j in range(8):
        k.vm(f"buffer_load_dwordx4 v[{32+4*j}:{35+4*j}], v10, s[12:15], s{20+j} offen")
    k.wait_all(lg=False)
    for c in range(8):
        for jp in range(4):
            k.e(f"v_perm_b32 v{64+4*c+jp}, v{32+4*(2*jp+1)+(c>>1)}, v{32+4*(2*jp)+(c>>1)}, s{36+(c&1)}")
        k.e(f"buffer_store_dwordx4 v[{64+4*c}:{67+4*c}], v{12+c}, s[8:11], 0 offen")
    k.e(f"""
    s_cmp_eq_u32 s38, 0
    s_cbranch_scc1 {P}end
    """)
    for c in range(8):
        k.e(f"v_mfma_f32_16x16x32_bf16 v[{96+4*c}:{99+4*c}], v[28:31], v[{64+4*c}:{67+4*c}], 0")
    for c in range(8):
        k.e(f"buffer_store_dword v{96+4*c}, v{20+c}, s[8:11], 0 offen")
    k.e(f"s_endpgm")

    k.label(P + "x")
    k.e(f"""
    s_sub_u32 s16, s16, {T_X}
    s_mov_b32 s12, s40
    s_mov_b32 s13, s41
    s_mov_b32 s14, {2048*576*2}
    s_lshl_b32 s30, s16, 4
    v_add_u32 v5, s30, v2
    v_mul_u32_u24 v10, 1152, v5
    v_lshl_add_u32 v10, v3, 4, v10
    s_mul_i32 s30, s16, {18*1024}
    s_add_u32 s30, s30, {XA}
    v_add_u32 v11, s30, v4
    v_mov_b32 v6, 0
    v_mov_b32 v7, 0
    """)
    for kb in range(18):
        k.vm(f"buffer_load_dwordx4 v[{32+4*kb}:{35+4*kb}], v10, s[12:15], 0 offen offset:{64*kb}", tag=("x", kb))
    for kb in range(18):
        k.wait(vm=("x", kb))
        if kb % 4 == 0 and kb:
            k.e(f"v_add_u32 v11, 4096, v11")
        k.vm(f"buffer_store_dwordx4 v[{32+4*kb}:{35+4*kb}], v11, s[8:11], 0 offen offset:{1024*(kb%4)}")
        for d in range(4):
            k.e(f"v_dot2c_f32_bf16 v6, v{32+4*kb+d}, v28")
            k.e(f"v_dot2c_f32_bf16 v7, v{32+4*kb+d}, v{32+4*kb+d}")
    k.e(f"""
    s_nop 3
    v_mov_b32 v8, v6
    v_mov_b32 v9, v7
    v_permlane32_swap_b32 v6, v8
    v_permlane32_swap_b32 v7, v9
    v_add_f32 v6, v6, v8
    v_add_f32 v7, v7, v9
    v_mov_b32 v8, v6
    v_mov_b32 v9, v7
    v_permlane16_swap_b32 v6, v8
    v_permlane16_swap_b32 v7, v9
    v_add_f32 v6, v6, v8
    v_add_f32 v7, v7, v9
    v_cmp_eq_u32 vcc, 0, v3
    v_lshlrev_b32 v5, 5, v5
    v_lshl_add_u32 v5, v3, 3, v5
    v_add_u32 v5, {STA}, v5
    v_cndmask_b32 v6, 0, v6, vcc
    v_cndmask_b32 v7, 0, v7, vcc
    buffer_store_dwordx2 v[6:7], v5, s[8:11], 0 offen
    """)
    k.label(P + "end")
    k.e("s_endpgm")
    return k
```

```python
WQKVP = 0x0000000
WOP   = 0x0200000
W13P  = 0x0300000
W2P   = 0x0E00000
CSQ   = 0x1400000
CS13  = 0x1440000
XA    = 0x1500000
XB    = 0x1800000
STA   = 0x1A80000
STB   = 0x1B40000
QF    = 0x1C00000
KF    = 0x1E00000
QL    = 0x2000000
KL    = 0x2040000
VF    = 0x2100000
OB    = 0x2400000
HB    = 0x2800000
PART  = 0x3A00000
WS_USED = 0x4C00000
WS_SIZE = 268435456
OOB = 0x7FFFFF00
```

```python
import sys
from asmlib import *
from layout import *
import k_prep, k_gemmb, k_attn, k_misc

HEAD = open("interleave_layers__softmax_full_mha__glu_gated_swiglu__prompt.s.ref").read().split("; Override")[0]

def build(launch_names=None, extra_empty=0):
    kerns = {
        "prep": (k_prep.gen_prep(), k_prep.PREP_WGS, 256, 0),
        "qkv": (k_gemmb.gen_qkv(), 192, 512, k_gemmb.LDS_B),
        "attn": (k_attn.gen_attn(), 256, 512, k_attn.LDS_A),
        "wo": (k_misc.gen_wo(), 256, 576, k_misc.LDS_WO),
        "ffn1": (k_misc.gen_ffn1(), 256, 512, k_misc.LDS_F1),
        "ffn2": (k_gemmb.gen_ffn2(), 256, 512, k_gemmb.LDS_B),
        "red": (k_misc.gen_red(False), 256, 128, 0),
        "redf": (k_misc.gen_red(True), 256, 128, 0),
    }
    order = launch_names or ["prep", "qkv", "attn", "wo", "ffn1", "ffn2", "red", "qkv", "attn", "wo", "ffn1", "ffn2", "redf"]
    s = HEAD
    for n in order:
        kk, g, b, l = kerns[n]
        s += f"; @launch kernel={kk.name} grid=({g},1,1) block=({b},1,1) lds={l}\n"
    for i in range(extra_empty):
        s += f"; @launch kernel=empty_kernel grid=(256,1,1) block=(256,1,1) lds=0\n"
    s += '.amdgcn_target "amdgcn-amd-amdhsa--gfx950"\n.text\n'
    desc = ""
    for n, (kk, g, b, l) in kerns.items():
        body = kk.text()
        s += f".globl {kk.name}\n.p2align 8\n.type {kk.name},@function\n{kk.name}:\n{body}"
        desc += ".p2align 6\n" + descriptor(kk.name, kk.vgpr, kk.sgpr, kk.accum)
        print(f"{kk.name}: {len(kk.ins)} instrs, pad {kk.npad}, regs {kk.check_regs()}", file=sys.stderr)
    if extra_empty:
        s += ".globl empty_kernel\n.p2align 8\n.type empty_kernel,@function\nempty_kernel:\n    s_endpgm\n"
        desc += ".p2align 6\n" + descriptor("empty_kernel", 8, 16)
    s += '.section .rodata,"a"\n' + desc
    return s

if __name__ == "__main__":
    out = sys.argv[1] if len(sys.argv) > 1 else "interleave_layers__softmax_full_mha__glu_gated_swiglu__prompt.s"
    extra = int(sys.argv[2]) if len(sys.argv) > 2 else 0
    open(out, "w").write(build(extra_empty=extra))
```

```python
import re

_REG = re.compile(r"\b([vas])(\d+)\b|\b([vas])\[(\d+):(\d+)\]")


def regs_of(op):
    out = set()
    for m in _REG.finditer(op):
        if m.group(1):
            out.add((m.group(1), int(m.group(2))))
        else:
            for i in range(int(m.group(4)), int(m.group(5)) + 1):
                out.add((m.group(3), i))
    if re.search(r"\bvcc(_lo|_hi)?\b", op):
        out.add(("s", "vcc"))
    if re.search(r"\bexec(_lo|_hi)?\b", op):
        out.add(("s", "exec"))
    if re.search(r"\bm0\b", op):
        out.add(("s", "m0"))
    return out


TRANS = ("v_exp_", "v_log_", "v_rcp_", "v_rsq_", "v_sqrt_", "v_sin_", "v_cos_")


class Ins:
    __slots__ = ("text", "mn", "kind", "wr", "rd", "passes", "srcc", "srcab", "ws", "label", "target", "wide_store",
                 "data", "is_lds_dma", "dpp")

    def __init__(self, text):
        self.text = text
        t = text.split(";")[0].strip()
        self.label = None
        self.target = None
        self.kind = "other"
        self.wr = set()
        self.rd = set()
        self.passes = 0
        self.srcc = set()
        self.srcab = set()
        self.ws = 1
        self.wide_store = False
        self.data = set()
        self.is_lds_dma = False
        self.dpp = False
        if t.endswith(":"):
            self.label = t[:-1]
            self.mn = ""
            self.ws = 0
            return
        if not t or t.startswith("."):
            self.mn = ""
            self.ws = 0
            return
        parts = t.split(None, 1)
        mn = parts[0]
        self.mn = mn
        rest = parts[1] if len(parts) > 1 else ""
        ops = [o.strip() for o in re.split(r",(?![^\[]*\])", rest)] if rest else []
        if mn == "s_nop":
            self.ws = int(ops[0], 0) + 1
            self.kind = "salu"
        elif mn.startswith("v_mfma"):
            self.kind = "mfma"
            self.wr = regs_of(ops[0])
            self.srcab = regs_of(ops[1]) | regs_of(ops[2])
            self.srcc = regs_of(ops[3])
            self.rd = self.srcab | self.srcc
            self.passes = 8 if "32x32" in mn else 4
        elif mn.startswith("v_"):
            self.kind = "valu"
            self.dpp = "_dpp" in mn
            if mn.startswith("v_permlane") and "swap" in mn:
                self.wr = regs_of(ops[0]) | regs_of(ops[1])
                self.rd = set(self.wr)
            elif mn.startswith(("v_add_co", "v_sub_co", "v_addc_co", "v_subb_co", "v_subrev_co", "v_div_scale",
                                "v_mad_u64", "v_mad_i64")):
                self.wr = regs_of(ops[0]) | regs_of(ops[1])
                for o in ops[2:]:
                    self.rd |= regs_of(o)
            else:
                self.wr = regs_of(ops[0])
                for o in ops[1:]:
                    self.rd |= regs_of(o)
                if mn.startswith(("v_fmac", "v_dot2c", "v_mac", "v_pk_fmac", "v_writelane")) or "UNUSED_PRESERVE" in t \
                        or self.dpp:
                    self.rd |= self.wr
                if mn.startswith("v_cmpx"):
                    self.wr |= {("s", "exec")}
        elif mn.startswith(("buffer_load", "global_load")):
            self.kind = "vmem"
            if " lds" in t or "_lds_" in mn:
                self.is_lds_dma = True
                for o in ops:
                    self.rd |= regs_of(o)
                self.rd.add(("s", "m0"))
            else:
                self.wr = regs_of(ops[0])
                for o in ops[1:]:
                    self.rd |= regs_of(o)
        elif mn.startswith(("buffer_store", "global_store", "buffer_atomic", "global_atomic")):
            self.kind = "vmem"
            for o in ops:
                self.rd |= regs_of(o)
            d = ops[0] if mn.startswith("buffer") else ops[1]
            self.data = regs_of(d)
            self.wide_store = mn.endswith(("x3", "x4"))
            if "atomic" in mn and "sc0" in t:
                self.wr = regs_of(ops[0])
        elif mn.startswith("ds_"):
            self.kind = "ds"
            if mn.startswith(("ds_read", "ds_bpermute", "ds_permute", "ds_swizzle")) or "_rtn" in mn:
                self.wr = regs_of(ops[0])
                for o in ops[1:]:
                    self.rd |= regs_of(o)
            else:
                for o in ops:
                    self.rd |= regs_of(o)
        elif mn.startswith("s_"):
            self.kind = "salu"
            if mn.startswith(("s_cbranch", "s_branch")):
                self.target = ops[0]
            elif mn.startswith(("s_cmp", "s_waitcnt", "s_barrier", "s_endpgm", "s_setprio", "s_sleep", "s_bitcmp")):
                for o in ops:
                    self.rd |= regs_of(o)
            elif ops:
                self.wr = regs_of(ops[0])
                for o in ops[1:]:
                    self.rd |= regs_of(o)
                if "saveexec" in mn:
                    self.wr.add(("s", "exec"))
        else:
            self.kind = "other"


def vec(s):
    return {r for r in s if r[0] in "va"}


def sca(s):
    return {r for r in s if r[0] == "s"}


def need(p, c):
    n = 0
    if p.kind == "valu":
        pv, ps = vec(p.wr), sca(p.wr)
        if c.kind == "mfma":
            if pv & c.rd:
                n = max(n, 2)
            if ("s", "exec") in ps:
                n = max(n, 4)
        if c.kind == "valu":
            if p.mn.startswith(TRANS) and not c.mn.startswith(TRANS) and (pv & c.rd):
                n = max(n, 1)
            if p.mn.startswith(TRANS) and (pv & c.rd):
                n = max(n, 1)
            if ("sdwa" in p.mn or "op_sel" in p.text) and (pv & (c.rd | c.wr)):
                n = max(n, 1)
            if c.mn.startswith("v_permlane") and (pv & c.rd):
                n = max(n, 2)
            if c.dpp and (pv & c.rd):
                n = max(n, 2)
            if c.mn.startswith(("v_readlane", "v_readfirstlane")) and (pv & c.rd):
                n = max(n, 1)
            if ps & c.rd:
                n = max(n, 4 if c.mn.startswith(("v_readlane", "v_writelane", "v_div_fmas")) else 2)
            if ("s", "vcc") in ps and c.mn.startswith(("v_cndmask", "v_addc", "v_subb", "v_div_fmas")):
                n = max(n, 4 if c.mn.startswith("v_div_fmas") else 2)
            if ("s", "exec") in ps:
                n = max(n, 5 if c.dpp else 4)
        if c.kind == "vmem" and (ps & c.rd):
            n = max(n, 5)
        if c.kind == "salu" and (ps & c.rd):
            n = max(n, 1)
        if c.kind == "salu" and c.mn.startswith("s_cbranch_vcc") and ("s", "vcc") in ps:
            n = max(n, 5)
        if c.kind == "salu" and c.mn.startswith("s_cbranch_exec") and ("s", "exec") in ps:
            n = max(n, 5)
    elif p.kind == "mfma":
        big = p.passes == 8
        d = p.wr
        if c.kind == "mfma":
            if d & c.srcab:
                n = max(n, 12 if big else 8)
            if d & c.srcc:
                if c.srcc == d and c.passes == p.passes:
                    pass
                else:
                    n = max(n, 10 if big else 6)
            elif d & c.wr:
                n = max(n, 10 if big else 6)
        elif c.kind in ("valu", "vmem", "ds"):
            if d & (c.rd | c.wr):
                n = max(n, 12 if big else 8)
            if c.kind == "valu" and (p.srcc & c.wr):
                n = max(n, 7 if big else 3)
            if c.kind in ("vmem", "ds") and (p.srcc & c.wr):
                n = max(n, 7 if big else 3)
    elif p.kind == "vmem":
        if p.wide_store and (p.data & c.wr):
            n = max(n, 2)
    elif p.kind == "salu":
        if ("s", "m0") in p.wr and (c.is_lds_dma or "addtid" in c.mn):
            n = max(n, 1)
    return n


LOOKBACK = 16


def required_pad(prev, c):
    dist = 0
    pad = 0
    for p in reversed(prev):
        if p.ws == 0:
            continue
        k = need(p, c)
        if k > dist:
            pad = max(pad, k - dist)
        dist += p.ws
        if dist >= LOOKBACK:
            break
    return pad


def nops(n):
    out = []
    while n > 0:
        k = min(n, 16)
        out.append(Ins(f"s_nop {k-1}"))
        n -= k
    return out


class Kern:
    def __init__(self, name, vgpr, sgpr=96, accum=None):
        self.name = name
        self.ins = []
        self.vmq = []
        self.lgq = []
        self.vgpr = vgpr
        self.sgpr = sgpr
        self.accum = accum
        self.npad = 0
        self.entries = []

    def e(self, s):
        for line in s.strip("\n").split("\n"):
            line = line.strip()
            if line:
                self.ins.append(Ins(line))

    def label(self, l):
        self.ins.append(Ins(l + ":"))

    def vm(self, s, tag=None):
        self.e(s)
        self.vmq.append(tag)

    def lg(self, s, tag=None):
        self.e(s)
        self.lgq.append(tag)

    def _cnt(self, q, tags):
        if not isinstance(tags, (list, set)):
            tags = [tags]
        idx = -1
        for i, t in enumerate(q):
            if t in tags:
                idx = i
        if idx < 0:
            return None
        return len(q) - 1 - idx

    def wait(self, vm=None, lg=None):
        parts = []
        if vm is not None:
            n = self._cnt(self.vmq, vm)
            if n is not None:
                n2 = min(n, 63)
                parts.append(f"vmcnt({n2})")
                self.vmq = self.vmq[len(self.vmq) - n2:] if n2 else []
        if lg is not None:
            n = self._cnt(self.lgq, lg)
            if n is not None:
                n2 = min(n, 15)
                parts.append(f"lgkmcnt({n2})")
                self.lgq = self.lgq[len(self.lgq) - n2:] if n2 else []
        if parts:
            self.e("s_waitcnt " + " ".join(parts))

    def wait_all(self, vm=True, lg=True):
        parts = []
        if vm:
            parts.append("vmcnt(0)")
            self.vmq = []
        if lg:
            parts.append("lgkmcnt(0)")
            self.lgq = []
        self.e("s_waitcnt " + " ".join(parts))

    STAMPS = False
    STAMP_INS = "s_memrealtime"
    STAMP_S = 64
    STAMP_BASE = 0x4C00000

    def stamp(self):
        if not Kern.STAMPS:
            return
        n = getattr(self, "nst", 0)
        self.nst = n + 1
        b = Kern.STAMP_S + 2 * n
        self.e(f"{Kern.STAMP_INS} s[{b}:{b+1}]")

    def stamp_dump(self, slot, swave):
        if not Kern.STAMPS:
            return
        self.stamp()
        self.sgpr = 102
        self.e(f"""
        s_waitcnt vmcnt(0) lgkmcnt(0)
        {Kern.STAMP_INS} s[{Kern.STAMP_S + 2*self.nst}:{Kern.STAMP_S + 2*self.nst+1}]
        s_waitcnt lgkmcnt(0)
        s_mov_b32 s10, 0x8000000
        s_lshl_b32 s100, s2, 4
        s_add_u32 s100, s100, s{swave}
        s_lshl_b32 s100, s100, 6
        s_add_u32 s100, s100, {Kern.STAMP_BASE + slot * 1024 * 1024}
        s_mov_b64 exec, 1
        v_mov_b32 v0, 0
        """)
        for i in range(self.nst + 1):
            self.e(f"v_mov_b32 v1, s{Kern.STAMP_S + 2*i}")
            self.e(f"buffer_store_dword v1, v0, s[8:11], s100 offen offset:{4*i}")
        self.nst_total = self.nst + 1

    def fix_hazards(self):
        out = []
        for c in self.ins:
            if c.ws:
                pad = required_pad(out, c)
                if pad:
                    self.npad += pad
                    out.extend(nops(pad))
            out.append(c)
        labels = {c.label: i for i, c in enumerate(out) if c.label}
        res = []
        for i, c in enumerate(out):
            if c.target and c.target in labels:
                seq = [x for x in out[max(0, i - 40):i + 1]]
                pad = 0
                dist = 0
                j = labels[c.target] + 1
                while j < len(out) and dist < LOOKBACK:
                    t = out[j]
                    if t.ws:
                        pad = max(pad, required_pad(seq, t))
                        seq = seq + [t]
                        dist += t.ws
                        if t.mn in ("s_branch", "s_endpgm"):
                            break
                    j += 1
                if pad:
                    self.npad += pad
                    res.extend(nops(pad))
            res.append(c)
        self.ins = res

    def check_regs(self):
        mv = ms = -1
        for c in self.ins:
            for r in c.rd | c.wr:
                if r[0] == "v":
                    mv = max(mv, r[1])
                elif r[0] == "s" and isinstance(r[1], int):
                    ms = max(ms, r[1])
        assert mv < self.vgpr, (self.name, "vgpr", mv, self.vgpr)
        assert ms < self.sgpr, (self.name, "sgpr", ms, self.sgpr)
        return mv, ms

    def text(self):
        self.fix_hazards()
        self.check_regs()
        s = []
        for c in self.ins:
            s.append(c.text if c.label else "    " + c.text)
        return "\n".join(s) + "\n"


def descriptor(name, vgpr, sgpr, accum=None):
    if accum is None:
        accum = min(256, (vgpr + 3) // 4 * 4)
    return f""".amdhsa_kernel {name}
  .amdhsa_next_free_vgpr {vgpr}
  .amdhsa_next_free_sgpr {sgpr}
  .amdhsa_accum_offset {accum}
  .amdhsa_group_segment_fixed_size 0
  .amdhsa_kernarg_size 80
  .amdhsa_user_sgpr_count 2
  .amdhsa_user_sgpr_kernarg_segment_ptr 1
  .amdhsa_system_sgpr_workgroup_id_x 1
.end_amdhsa_kernel
"""
```

```python
from asmlib import *
from layout import *

N_W13 = 648
N_W2 = 720
N_QKV = 252
N_WO = 90
N_X = 128
T_QKV = 0
T_X = T_QKV + N_QKV
T_WO = T_X + N_X
T_END = T_WO + N_WO
PREP_WGS = (T_END + 3) // 4
A_W1 = 0
A_W3 = N_W13
A_W2 = 2 * N_W13
A_END = A_W2 + N_W2


def ws_srd(k, sptr=4, srd=8):
    k.e(f"""
    s_mov_b32 s{srd}, s{sptr}
    s_mov_b32 s{srd+1}, s{sptr+1}
    s_mov_b32 s{srd+2}, {WS_USED}
    s_mov_b32 s{srd+3}, 0x20000
    """)


def sdiv(k, q, r, x, d, tmp):
    magic = (2 ** 32 + d - 1) // d
    k.e(f"""
    s_mul_hi_u32 s{q}, s{x}, {magic}
    s_mul_i32 s{tmp}, s{q}, {d}
    s_sub_u32 s{r}, s{x}, s{tmp}
    """)


def ffn_task_setup(k, P, sT, S, V, vlane):
    T = S + 16
    o, g, t0, t1 = V + 4, V + 5, V + 6, V + 7
    k.e(f"""
    v_and_b32 v{o}, 15, v{vlane}
    v_lshrrev_b32 v{g}, 4, v{vlane}
    s_mov_b32 s{S+2}, {4608*576*2}
    s_mov_b32 s{S+3}, 0x20000
    s_cmp_lt_u32 s{sT}, {A_W2}
    s_cbranch_scc1 {P}w13
    s_sub_u32 s{T}, s{sT}, {A_W2}
    s_min_u32 s{T}, s{T}, {N_W2-1}
    s_mov_b32 s{S}, s{S+26}
    s_mov_b32 s{S+1}, s{S+27}
    """)
    sdiv(k, T + 1, T + 2, T, 5, T + 3)
    sdiv(k, T + 3, T + 4, T + 1, 9, T + 5)
    k.e(f"""
    s_lshr_b32 s{T+5}, s{T+4}, 2
    s_mul_i32 s{T+5}, s{T+5}, 9
    s_and_b32 s{T}, s{T+4}, 3
    s_lshl_b32 s{T}, s{T}, 1
    s_add_u32 s{T+5}, s{T+5}, s{T}
    s_add_u32 s{T}, s{T+5}, 1
    s_cmp_eq_u32 s{T+4}, 8
    s_cselect_b32 s{T+5}, 8, s{T+5}
    s_cselect_b32 s{T}, 17, s{T}
    s_mul_i32 s{T+3}, s{T+3}, 18
    s_add_u32 s{T+5}, s{T+5}, s{T+3}
    s_add_u32 s{T}, s{T}, s{T+3}
    """)
    for e, tau in ((0, T + 5), (1, T)):
        k.e(f"""
        s_lshr_b32 s{T+3}, s{tau}, 3
        s_lshl_b32 s{T+3}, s{T+3}, 7
        s_and_b32 s{T+4}, s{tau}, 7
        s_add_u32 s{T+3}, s{T+3}, s{T+4}
        s_mul_i32 s{S+4+4*e}, s{T+3}, 1152
        """)
        for j in range(1, 4):
            k.e(f"s_add_u32 s{S+4+4*e+j}, s{S+4+4*e}, {8*j*1152}")
    for c in range(4):
        k.e(f"s_mov_b32 s{S+12+c}, {16*c}")
    k.e(f"""
    s_lshl_b32 s{T+3}, s{T+2}, 7
    v_lshl_add_u32 v{t0}, v{o}, 3, s{T+3}
    v_mul_u32_u24 v{V}, {32*1152}, v{g}
    v_lshl_add_u32 v{V}, v{t0}, 1, v{V}
    v_mul_u32_u24 v{t1}, 456, v{t0}
    v_lshrrev_b32 v{t1}, 16, v{t1}
    v_mul_u32_u24 v{V+3}, 144, v{t1}
    v_sub_u32 v{V+3}, v{t0}, v{V+3}
    """)
    sdiv(k, T + 3, T + 4, T + 1, 36, T + 5)
    sdiv(k, T + 5, T, T + 4, 18, T + 2)
    k.e(f"""
    s_mul_i32 s{T+3}, s{T+3}, 18
    s_add_u32 s{T+3}, s{T+3}, s{T}
    s_lshl_b32 s{T+3}, s{T+3}, 1
    s_add_u32 s{T+3}, s{T+3}, s{T+5}
    s_mul_i32 s{T+3}, s{T+3}, 9216
    s_add_u32 s{T+3}, s{T+3}, {W2P}
    v_lshrrev_b32 v{V+1}, 5, v{V+3}
    v_lshlrev_b32 v{V+1}, 11, v{V+1}
    v_bfe_u32 v{V+2}, v{V+3}, 3, 2
    v_cmp_gt_u32 vcc, 128, v{V+3}
    v_lshlrev_b32 v{o}, 6, v{V+2}
    v_lshlrev_b32 v{V+2}, 7, v{V+2}
    v_cndmask_b32 v{V+2}, v{V+2}, v{o}, vcc
    v_add_u32 v{V+1}, v{V+1}, v{V+2}
    v_lshl_add_u32 v{V+1}, v{g}, 8, v{V+1}
    v_mul_u32_u24 v{t1}, {4*18*2*9*1024}, v{t1}
    v_add_u32 v{V+1}, v{V+1}, v{t1}
    v_add_u32 v{V+1}, s{T+3}, v{V+1}
    v_mov_b32 v{o}, 64
    v_mov_b32 v{t1}, 1024
    v_cndmask_b32 v{V+2}, v{o}, v{t1}, vcc
    v_add_u32 v{V+2}, v{V+1}, v{V+2}
    v_mov_b32 v{V+3}, {OOB}
    v_cmp_gt_u32 vcc, 576, v{t0}
    s_cmp_lt_u32 s{sT}, {A_END}
    s_cselect_b64 vcc, vcc, 0
    s_nop 1
    v_cndmask_b32 v{V+1}, v{V+3}, v{V+1}, vcc
    v_cndmask_b32 v{V+2}, v{V+3}, v{V+2}, vcc
    s_branch {P}done
    """)
    k.label(P + "w13")
    k.e(f"""
    s_cmp_lt_u32 s{sT}, {A_W3}
    s_cselect_b32 s{S}, s{S+22}, s{S+24}
    s_cselect_b32 s{S+1}, s{S+23}, s{S+25}
    s_cselect_b32 s{T+5}, 0, 1
    s_cselect_b32 s{T}, 0, {N_W13}
    s_sub_u32 s{T}, s{sT}, s{T}
    """)
    sdiv(k, T + 1, T + 2, T, 36, T + 3)
    for j in range(8):
        k.e(f"s_mov_b32 s{S+4+j}, {j*9216}")
    for c in range(4):
        k.e(f"s_mov_b32 s{S+12+c}, {36864*c}")
    k.e(f"""
    s_lshl_b32 s{T+3}, s{T+1}, 5
    v_lshl_add_u32 v{V}, v{g}, 3, s{T+3}
    v_mul_u32_u24 v{V}, 9216, v{V}
    s_lshl_b32 s{T+3}, s{T+2}, 8
    v_lshl_add_u32 v{t0}, v{o}, 4, s{T+3}
    v_add_u32 v{V}, v{V}, v{t0}
    s_mul_i32 s{T+3}, s{T+2}, {8*18}
    s_add_u32 s{T+3}, s{T+3}, s{T+1}
    s_lshl_b32 s{T+3}, s{T+3}, 1
    s_add_u32 s{T+3}, s{T+3}, s{T+5}
    s_lshl_b32 s{T+3}, s{T+3}, 10
    s_add_u32 s{T+3}, s{T+3}, {W13P}
    v_lshl_add_u32 v{V+1}, v{vlane}, 4, s{T+3}
    v_add_u32 v{V+2}, {4*36864}, v{V+1}
    s_mul_i32 s{T+3}, s{T+1}, 288
    s_lshl_b32 s{T+4}, s{T+2}, 3
    s_add_u32 s{T+3}, s{T+3}, s{T+4}
    s_lshl_b32 s{T+3}, s{T+3}, 1
    s_add_u32 s{T+3}, s{T+3}, s{T+5}
    s_lshl_b32 s{T+3}, s{T+3}, 6
    s_add_u32 s{T+3}, s{T+3}, {CS13}
    v_lshl_add_u32 v{V+3}, v{o}, 2, s{T+3}
    v_mov_b32 v{t0}, {OOB}
    v_cmp_gt_u32 vcc, 16, v{vlane}
    s_nop 1
    v_cndmask_b32 v{V+3}, v{t0}, v{V+3}, vcc
    """)
    k.label(P + "done")


def gen_prep():
    k = Kern("prep_kernel", vgpr=128, sgpr=64)
    P = "Lp_"
    k.e(f"""
    s_load_dwordx8 s[40:47], s[0:1], 0
    s_load_dwordx2 s[4:5], s[0:1], 72
    v_lshrrev_b32 v1, 6, v0
    v_and_b32 v0, 63, v0
    v_readfirstlane_b32 s16, v1
    s_lshl_b32 s17, s2, 2
    s_add_u32 s16, s16, s17
    v_and_b32 v2, 15, v0
    v_lshrrev_b32 v3, 4, v0
    v_lshlrev_b32 v4, 4, v0
    v_mov_b32 v28, 0x3f803f80
    v_mov_b32 v29, 0x3f803f80
    v_mov_b32 v30, 0x3f803f80
    v_mov_b32 v31, 0x3f803f80
    s_mov_b32 s36, 0x05040100
    s_mov_b32 s37, 0x07060302
    s_mov_b32 s15, 0x20000
    s_waitcnt lgkmcnt(0)
    """)
    ws_srd(k)

    def loads():
        for j in range(8):
            k.e(f"buffer_load_dwordx4 v[{32+4*j}:{35+4*j}], v10, s[12:15], s{20+j} offen")

    k.e(f"""
    s_cmp_ge_u32 s16, {T_END}
    s_cbranch_scc1 {P}end
    s_cmp_lt_u32 s16, {T_X}
    s_cbranch_scc1 {P}qkv
    s_cmp_lt_u32 s16, {T_WO}
    s_cbranch_scc1 {P}x
    """)
    k.e(f"s_sub_u32 s16, s16, {T_WO}")
    sdiv(k, 17, 18, 16, 5, 19)
    k.e(f"""
    s_mov_b32 s12, s44
    s_mov_b32 s13, s45
    s_mov_b32 s14, {576*576*2}
    s_lshl_b32 s30, s18, 3
    v_lshrrev_b32 v5, 1, v2
    v_add_u32 v5, s30, v5
    v_and_b32 v6, 1, v2
    v_lshlrev_b32 v6, 7, v6
    v_lshl_add_u32 v6, v3, 8, v6
    s_lshl_b32 s30, s18, 8
    v_lshlrev_b32 v7, 4, v2
    v_add_u32 v7, s30, v7
    s_cmp_ge_u32 s17, 16
    s_cbranch_scc1 {P}wo_tail
    """)
    for j in range(8):
        k.e(f"s_mov_b32 s{20+j}, {j*1152}")
    k.e(f"""
    s_mul_i32 s30, s17, 36
    v_lshrrev_b32 v10, 1, v3
    v_mul_u32_u24 v10, 18, v10
    v_and_b32 v9, 1, v3
    v_lshl_add_u32 v10, v9, 3, v10
    v_add_u32 v10, s30, v10
    s_branch {P}wo_join
    """)
    k.label(P + "wo_tail")
    for j in range(8):
        k.e(f"s_mov_b32 s{20+j}, {(18*(j>>1) + (j&1))*1152}")
    k.e(f"""
    s_sub_u32 s30, s17, 16
    s_mul_i32 s30, s30, 288
    s_add_u32 s30, s30, 16
    v_mul_u32_u24 v10, 72, v3
    v_add_u32 v10, s30, v10
    """)
    k.label(P + "wo_join")
    k.e(f"""
    v_mul_u32_u24 v10, 1152, v10
    v_add_u32 v10, v10, v7
    """)
    loads()
    k.e(f"""
    v_mul_u32_u24 v8, 18, v5
    v_add_u32 v8, s17, v8
    v_lshl_add_u32 v8, v8, 10, v6
    v_add_u32 v8, {WOP}, v8
    v_cmp_gt_u32 vcc, 36, v5
    v_mov_b32 v9, {OOB}
    v_cndmask_b32 v12, v9, v8, vcc
    """)
    for c in range(1, 8):
        k.e(f"v_add_u32 v{12+c}, {16*c}, v12")
    for c in range(8):
        k.e(f"v_mov_b32 v{20+c}, v9")
    k.e(f"s_branch {P}core")

    k.label(P + "qkv")
    sdiv(k, 17, 18, 16, 14, 19)
    k.e(f"""
    s_mov_b32 s12, s42
    s_mov_b32 s13, s43
    s_mov_b32 s14, {576*1728*2}
    """)
    for j in range(8):
        k.e(f"s_mov_b32 s{20+j}, {j*3456}")
    k.e(f"""
    s_lshl_b32 s30, s17, 5
    v_lshl_add_u32 v10, v3, 3, s30
    v_mul_u32_u24 v10, 3456, v10
    s_lshl_b32 s30, s18, 8
    v_lshl_add_u32 v9, v2, 4, s30
    v_add_u32 v10, v10, v9
    """)
    loads()
    sdiv(k, 32, 33, 17, 9, 19)
    k.e(f"""
    s_lshl_b32 s30, s33, 1
    s_add_u32 s30, s30, s32
    s_mul_i32 s30, s30, 9216
    s_add_u32 s30, s30, {WQKVP}
    v_lshl_add_u32 v11, v3, 8, s30
    s_mul_i32 s31, s17, {12*144*4}
    s_add_u32 s31, s31, {CSQ}
    s_lshl_b32 s35, s18, 7
    v_lshl_add_u32 v5, v2, 3, s35
    v_mov_b32 v72, {OOB}
    v_cmp_gt_u32 s[56:57], 16, v0
    """)
    for c in range(8):
        k.e(f"""
        v_add_u32 v6, {c}, v5
        v_mul_u32_u24 v7, 3641, v6
        v_lshrrev_b32 v7, 16, v7
        v_mul_u32_u24 v8, 18, v7
        v_sub_u32 v8, v6, v8
        v_and_b32 v9, 7, v7
        v_lshrrev_b32 v7, 3, v7
        v_lshrrev_b32 v64, 3, v8
        v_lshlrev_b32 v64, 2, v64
        v_and_or_b32 v64, v8, 3, v64
        v_bfe_u32 v65, v8, 2, 1
        v_and_b32 v66, 6, v9
        v_add_u32 v66, v66, v65
        v_lshlrev_b32 v66, 4, v66
        v_and_b32 v67, 1, v9
        v_lshl_add_u32 v66, v67, 3, v66
        v_lshlrev_b32 v67, 4, v9
        v_lshl_add_u32 v67, v65, 3, v67
        v_cmp_gt_u32 vcc, 8, v7
        v_lshl_add_u32 v68, v9, 1, v8
        v_add_u32 v68, 112, v68
        v_cndmask_b32 v66, v67, v66, vcc
        v_add_u32 v66, v66, v64
        v_cmp_gt_u32 vcc, 16, v8
        v_mul_u32_u24 v69, {9*2*9}, v7
        v_mul_u32_u24 v70, 144, v7
        v_cndmask_b32 v66, v68, v66, vcc
        v_lshrrev_b32 v67, 4, v66
        v_add_u32 v69, v69, v67
        v_and_b32 v67, 15, v66
        v_lshlrev_b32 v67, 4, v67
        v_lshl_add_u32 v69, v69, 10, v67
        v_add_u32 v69, v69, v11
        v_cmp_gt_u32 vcc, 1728, v6
        v_add_u32 v70, v70, v66
        v_lshl_add_u32 v70, v70, 2, s31
        v_cndmask_b32 v{12+c}, v72, v69, vcc
        s_and_b64 vcc, vcc, s[56:57]
        s_nop 1
        v_cndmask_b32 v{20+c}, v72, v70, vcc
        """)

    k.label(P + "core")
    k.wait_all(lg=False)
    for c in range(8):
        for jp in range(4):
            k.e(f"v_perm_b32 v{64+4*c+jp}, v{32+4*(2*jp+1)+(c>>1)}, v{32+4*(2*jp)+(c>>1)}, s{36+(c&1)}")
        k.e(f"buffer_store_dwordx4 v[{64+4*c}:{67+4*c}], v{12+c}, s[8:11], 0 offen")
    for c in range(8):
        k.e(f"v_mfma_f32_16x16x32_bf16 v[{96+4*c}:{99+4*c}], v[28:31], v[{64+4*c}:{67+4*c}], 0")
    for c in range(8):
        k.e(f"buffer_store_dword v{96+4*c}, v{20+c}, s[8:11], 0 offen")
    k.e(f"s_endpgm")

    k.label(P + "x")
    k.e(f"""
    s_sub_u32 s16, s16, {T_X}
    s_mov_b32 s12, s40
    s_mov_b32 s13, s41
    s_mov_b32 s14, {2048*576*2}
    s_lshl_b32 s30, s16, 4
    v_add_u32 v5, s30, v2
    v_mul_u32_u24 v10, 1152, v5
    v_lshl_add_u32 v10, v3, 4, v10
    s_mul_i32 s30, s16, {18*1024}
    s_add_u32 s30, s30, {XA}
    v_add_u32 v11, s30, v4
    v_mov_b32 v12, 0
    v_mov_b32 v13, 0
    v_mov_b32 v14, 0
    v_mov_b32 v15, 0
    v_mov_b32 v16, 0
    v_mov_b32 v17, 0
    s_mul_i32 s31, s16, 4608
    s_add_u32 s31, s31, {STA}
    """)
    for kb in range(18):
        k.vm(f"buffer_load_dwordx4 v[{32+4*kb}:{35+4*kb}], v10, s[12:15], 0 offen offset:{64*kb}", tag=("x", kb))
    for kb in range(18):
        k.wait(vm=("x", kb))
        if kb % 4 == 0 and kb:
            k.e(f"v_add_u32 v11, 4096, v11")
        k.vm(f"buffer_store_dwordx4 v[{32+4*kb}:{35+4*kb}], v11, s[8:11], 0 offen offset:{1024*(kb%4)}")
        for d in range(4):
            k.e(f"v_dot2c_f32_bf16 v12, v{32+4*kb+d}, v28")
            k.e(f"v_dot2c_f32_bf16 v13, v{32+4*kb+d}, v{32+4*kb+d}")
    for i in range(1, 4):
        k.e(f"buffer_store_dwordx4 v[14:17], v4, s[8:11], s31 offen offset:{1024*i}")
    k.e(f"""
    buffer_store_dwordx4 v[12:15], v4, s[8:11], s31 offen
    s_add_u32 s31, s31, 4096
    s_mov_b32 exec_hi, 0
    buffer_store_dwordx4 v[14:17], v4, s[8:11], s31 offen
    """)
    k.label(P + "end")
    k.e("s_endpgm")
    return k
```

```python
from asmlib import *
from layout import *

N_W13 = 648
N_W2 = 576
N_W2T = 72
N_QKV = 252
N_WO = 90
N_X = 128
T_QKV = 0
T_X = T_QKV + N_QKV
T_WO = T_X + N_X
T_W2T = T_WO + N_WO
T_Z = T_W2T + N_W2T
T_END = T_Z + 2
PREP_WGS = (T_END + 3) // 4
A_W1 = 0
A_W3 = N_W13
A_W2 = 2 * N_W13
A_END = A_W2 + N_W2


def ws_srd(k, sptr=4, srd=8):
    k.e(f"""
    s_mov_b32 s{srd}, s{sptr}
    s_mov_b32 s{srd+1}, s{sptr+1}
    s_mov_b32 s{srd+2}, {WS_USED}
    s_mov_b32 s{srd+3}, 0x20000
    """)


def sdiv(k, q, r, x, d, tmp):
    magic = (2 ** 32 + d - 1) // d
    k.e(f"""
    s_mul_hi_u32 s{q}, s{x}, {magic}
    s_mul_i32 s{tmp}, s{q}, {d}
    s_sub_u32 s{r}, s{x}, s{tmp}
    """)


CGS = 4 * 18 * 2 * 9 * 1024


def w2_rows(k, skb, SO, T, vsrc, vg, vt):
    sdiv(k, T + 3, T + 4, skb, 9, T + 5)
    k.e(f"""
    s_lshr_b32 s{T+5}, s{T+4}, 2
    s_mul_i32 s{T+5}, s{T+5}, 9
    s_and_b32 s{T}, s{T+4}, 3
    s_lshl_b32 s{T}, s{T}, 1
    s_add_u32 s{T+5}, s{T+5}, s{T}
    s_add_u32 s{T}, s{T+5}, 1
    s_cmp_eq_u32 s{T+4}, 8
    s_cselect_b32 s{T+5}, 8, s{T+5}
    s_cselect_b32 s{T}, 17, s{T}
    s_mul_i32 s{T+3}, s{T+3}, 18
    s_add_u32 s{T+5}, s{T+5}, s{T+3}
    s_add_u32 s{T}, s{T}, s{T+3}
    """)
    for e, tau in ((0, T + 5), (1, T)):
        k.e(f"""
        s_lshr_b32 s{T+3}, s{tau}, 3
        s_lshl_b32 s{T+3}, s{T+3}, 7
        s_and_b32 s{SO+1}, s{tau}, 7
        s_add_u32 s{T+3}, s{T+3}, s{SO+1}
        s_mul_i32 s{SO+4*e}, s{T+3}, 1152
        """)
    k.e(f"""
    s_sub_u32 s{T+5}, s{SO+4}, s{SO}
    s_add_u32 s{T+3}, s{SO}, {32*1152}
    s_cmp_eq_u32 s{T+4}, 8
    s_cselect_b32 s{T+5}, s{T+5}, {64*1152}
    s_cselect_b32 s{SO+4}, s{T+3}, s{SO+4}
    s_cselect_b32 s{T}, 2, 1
    s_mul_i32 s{T}, s{T}, {32*1152}
    v_lshrrev_b32 v{vt}, 1, v{vg}
    v_mul_lo_u32 v{vsrc}, v{vt}, s{T+5}
    v_and_b32 v{vt}, 1, v{vg}
    v_mul_lo_u32 v{vt}, v{vt}, s{T}
    v_add_u32 v{vsrc}, v{vsrc}, v{vt}
    """)
    for e in range(2):
        for j in range(1, 4):
            k.e(f"s_add_u32 s{SO+4*e+j}, s{SO+4*e}, {8*j*1152}")
    sdiv(k, T + 3, T + 4, skb, 36, T + 5)
    k.e(f"""
    s_mul_i32 s{T+3}, s{T+3}, 36
    s_cmp_ge_u32 s{T+4}, 18
    s_cselect_b32 s{T+5}, 35, 0
    s_lshl_b32 s{T+4}, s{T+4}, 1
    s_sub_u32 s{T+4}, s{T+4}, s{T+5}
    s_add_u32 s{T+3}, s{T+3}, s{T+4}
    s_mul_i32 s{T+3}, s{T+3}, 9216
    """)


def ffn_task_setup(k, P, sT, S, V, vlane):
    T = S + 16
    o, g, t0, t1 = V + 4, V + 5, V + 6, V + 7
    k.e(f"""
    v_and_b32 v{o}, 15, v{vlane}
    v_lshrrev_b32 v{g}, 4, v{vlane}
    s_mov_b32 s{S+2}, {4608*576*2}
    s_mov_b32 s{S+3}, 0x20000
    s_cmp_lt_u32 s{sT}, {A_W2}
    s_cbranch_scc1 {P}w13
    s_sub_u32 s{T}, s{sT}, {A_W2}
    s_min_u32 s{T}, s{T}, {N_W2-1}
    s_mov_b32 s{S}, s{S+26}
    s_mov_b32 s{S+1}, s{S+27}
    s_lshr_b32 s{T+1}, s{T}, 2
    s_and_b32 s{T+2}, s{T}, 3
    """)
    w2_rows(k, T + 1, S + 4, T, V, g, t0)
    k.e(f"""
    s_add_u32 s{T+3}, s{T+3}, {W2P}
    v_mov_b32 v{V+3}, {OOB}
    s_mul_i32 s{T+4}, s{T+2}, 288
    v_lshl_add_u32 v{V}, v{o}, 4, v{V}
    v_add_u32 v{V}, s{T+4}, v{V}
    s_mul_i32 s{T+4}, s{T+2}, {CGS}
    s_add_u32 s{T+3}, s{T+3}, s{T+4}
    s_cmp_lt_u32 s{sT}, {A_END}
    s_cselect_b32 s{T+3}, s{T+3}, {OOB - 8192}
    v_lshl_add_u32 v{V+1}, v{vlane}, 4, s{T+3}
    v_add_u32 v{V+2}, 4096, v{V+1}
    """)
    for c in range(4):
        k.e(f"s_mov_b32 s{S+12+c}, {1024*c}")
    k.e(f"s_branch {P}done")
    k.label(P + "w13")
    k.e(f"""
    s_cmp_lt_u32 s{sT}, {A_W3}
    s_cselect_b32 s{S}, s{S+22}, s{S+24}
    s_cselect_b32 s{S+1}, s{S+23}, s{S+25}
    s_cselect_b32 s{T+5}, 0, 1
    s_cselect_b32 s{T}, 0, {N_W13}
    s_sub_u32 s{T}, s{sT}, s{T}
    """)
    sdiv(k, T + 1, T + 2, T, 36, T + 3)
    for j in range(8):
        k.e(f"s_mov_b32 s{S+4+j}, {j*9216}")
    for c in range(4):
        k.e(f"s_mov_b32 s{S+12+c}, {36864*c}")
    k.e(f"""
    s_lshl_b32 s{T+3}, s{T+1}, 5
    v_lshl_add_u32 v{V}, v{g}, 3, s{T+3}
    v_mul_u32_u24 v{V}, 9216, v{V}
    s_lshl_b32 s{T+3}, s{T+2}, 8
    v_lshl_add_u32 v{t0}, v{o}, 4, s{T+3}
    v_add_u32 v{V}, v{V}, v{t0}
    s_mul_i32 s{T+3}, s{T+2}, {8*18}
    s_add_u32 s{T+3}, s{T+3}, s{T+1}
    s_lshl_b32 s{T+3}, s{T+3}, 1
    s_add_u32 s{T+3}, s{T+3}, s{T+5}
    s_lshl_b32 s{T+3}, s{T+3}, 10
    s_add_u32 s{T+3}, s{T+3}, {W13P}
    v_lshl_add_u32 v{V+1}, v{vlane}, 4, s{T+3}
    v_add_u32 v{V+2}, {4*36864}, v{V+1}
    s_mul_i32 s{T+3}, s{T+1}, 288
    s_lshl_b32 s{T+4}, s{T+2}, 3
    s_add_u32 s{T+3}, s{T+3}, s{T+4}
    s_lshl_b32 s{T+3}, s{T+3}, 1
    s_add_u32 s{T+3}, s{T+3}, s{T+5}
    s_lshl_b32 s{T+3}, s{T+3}, 6
    s_add_u32 s{T+3}, s{T+3}, {CS13}
    v_lshl_add_u32 v{V+3}, v{o}, 2, s{T+3}
    v_mov_b32 v{t0}, {OOB}
    v_cmp_gt_u32 vcc, 16, v{vlane}
    s_nop 1
    v_cndmask_b32 v{V+3}, v{t0}, v{V+3}, vcc
    """)
    k.label(P + "done")


def gen_prep():
    k = Kern("prep_kernel", vgpr=128, sgpr=64)
    P = "Lp_"
    k.e(f"""
    s_load_dwordx8 s[40:47], s[0:1], 0
    s_load_dwordx2 s[48:49], s[0:1], 48
    s_load_dwordx2 s[4:5], s[0:1], 72
    v_lshrrev_b32 v1, 6, v0
    v_and_b32 v0, 63, v0
    v_readfirstlane_b32 s16, v1
    s_lshl_b32 s17, s2, 2
    s_add_u32 s16, s16, s17
    v_and_b32 v2, 15, v0
    v_lshrrev_b32 v3, 4, v0
    v_lshlrev_b32 v4, 4, v0
    v_mov_b32 v28, 0x3f803f80
    v_mov_b32 v29, 0x3f803f80
    v_mov_b32 v30, 0x3f803f80
    v_mov_b32 v31, 0x3f803f80
    s_mov_b32 s36, 0x05040100
    s_mov_b32 s37, 0x07060302
    s_mov_b32 s15, 0x20000
    s_waitcnt lgkmcnt(0)
    """)
    ws_srd(k)

    def loads():
        for j in range(8):
            k.e(f"buffer_load_dwordx4 v[{32+4*j}:{35+4*j}], v10, s[12:15], s{20+j} offen")

    k.e(f"""
    s_cmp_ge_u32 s16, {T_END}
    s_cbranch_scc1 {P}end
    s_cmp_lt_u32 s16, {T_X}
    s_cbranch_scc1 {P}qkv
    s_cmp_lt_u32 s16, {T_WO}
    s_cbranch_scc1 {P}x
    s_cmp_ge_u32 s16, {T_Z}
    s_cbranch_scc1 {P}z
    s_cmp_lt_u32 s16, {T_W2T}
    s_cbranch_scc1 {P}wo
    """)
    k.e(f"""
    s_sub_u32 s17, s16, {T_W2T}
    s_mov_b32 s12, s48
    s_mov_b32 s13, s49
    s_mov_b32 s14, {4608*576*2}
    """)
    w2_rows(k, 17, 20, 28, 10, 3, 5)
    k.e(f"""
    v_bfe_u32 v5, v2, 1, 2
    v_mul_u32_u24 v6, 288, v5
    v_add_u32 v10, v10, v6
    v_mul_u32_u24 v12, {CGS}, v5
    v_and_b32 v5, 1, v2
    v_lshl_add_u32 v10, v5, 4, v10
    v_add_u32 v10, 256, v10
    v_lshl_add_u32 v12, v5, 7, v12
    v_lshl_add_u32 v12, v3, 8, v12
    v_lshrrev_b32 v5, 3, v2
    v_mul_u32_u24 v6, {2304*1152}, v5
    v_add_u32 v10, v10, v6
    """)
    loads()
    k.e(f"""
    v_mul_u32_u24 v6, {2*18*2*9216}, v5
    v_add_u32 v12, v12, v6
    s_add_u32 s31, s31, {W2P + 8192}
    v_add_u32 v12, s31, v12
    v_mov_b32 v9, {OOB}
    s_branch {P}dst16
    """)
    k.label(P + "wo")
    k.e(f"s_sub_u32 s16, s16, {T_WO}")
    sdiv(k, 17, 18, 16, 5, 19)
    k.e(f"""
    s_mov_b32 s12, s44
    s_mov_b32 s13, s45
    s_mov_b32 s14, {576*576*2}
    s_lshl_b32 s30, s18, 3
    v_lshrrev_b32 v5, 1, v2
    v_add_u32 v5, s30, v5
    v_and_b32 v6, 1, v2
    v_lshlrev_b32 v6, 7, v6
    v_lshl_add_u32 v6, v3, 8, v6
    s_lshl_b32 s30, s18, 8
    v_lshlrev_b32 v7, 4, v2
    v_add_u32 v7, s30, v7
    s_cmp_ge_u32 s17, 16
    s_cbranch_scc1 {P}wo_tail
    """)
    for j in range(8):
        k.e(f"s_mov_b32 s{20+j}, {j*1152}")
    k.e(f"""
    s_mul_i32 s30, s17, 36
    v_lshrrev_b32 v10, 1, v3
    v_mul_u32_u24 v10, 18, v10
    v_and_b32 v9, 1, v3
    v_lshl_add_u32 v10, v9, 3, v10
    v_add_u32 v10, s30, v10
    s_branch {P}wo_join
    """)
    k.label(P + "wo_tail")
    for j in range(8):
        k.e(f"s_mov_b32 s{20+j}, {(18*(j>>1) + (j&1))*1152}")
    k.e(f"""
    s_sub_u32 s30, s17, 16
    s_mul_i32 s30, s30, 288
    s_add_u32 s30, s30, 16
    v_mul_u32_u24 v10, 72, v3
    v_add_u32 v10, s30, v10
    """)
    k.label(P + "wo_join")
    k.e(f"""
    v_mul_u32_u24 v10, 1152, v10
    v_add_u32 v10, v10, v7
    """)
    loads()
    k.e(f"""
    v_mul_u32_u24 v8, 18, v5
    v_add_u32 v8, s17, v8
    v_lshl_add_u32 v8, v8, 10, v6
    v_add_u32 v8, {WOP}, v8
    v_cmp_gt_u32 vcc, 36, v5
    v_mov_b32 v9, {OOB}
    v_cndmask_b32 v12, v9, v8, vcc
    """)
    k.label(P + "dst16")
    for c in range(1, 8):
        k.e(f"v_add_u32 v{12+c}, {16*c}, v12")
    for c in range(8):
        k.e(f"v_mov_b32 v{20+c}, v9")
    k.e(f"s_branch {P}core")

    k.label(P + "qkv")
    sdiv(k, 17, 18, 16, 14, 19)
    k.e(f"""
    s_mov_b32 s12, s42
    s_mov_b32 s13, s43
    s_mov_b32 s14, {576*1728*2}
    """)
    for j in range(8):
        k.e(f"s_mov_b32 s{20+j}, {j*3456}")
    k.e(f"""
    s_lshl_b32 s30, s17, 5
    v_lshl_add_u32 v10, v3, 3, s30
    v_mul_u32_u24 v10, 3456, v10
    s_lshl_b32 s30, s18, 8
    v_lshl_add_u32 v9, v2, 4, s30
    v_add_u32 v10, v10, v9
    """)
    loads()
    sdiv(k, 32, 33, 17, 9, 19)
    k.e(f"""
    s_lshl_b32 s30, s33, 1
    s_add_u32 s30, s30, s32
    s_mul_i32 s30, s30, 9216
    s_add_u32 s30, s30, {WQKVP}
    v_lshl_add_u32 v11, v3, 8, s30
    s_mul_i32 s31, s17, {12*144*4}
    s_add_u32 s31, s31, {CSQ}
    s_lshl_b32 s35, s18, 7
    v_lshl_add_u32 v5, v2, 3, s35
    v_mov_b32 v72, {OOB}
    v_cmp_gt_u32 s[56:57], 16, v0
    """)
    for c in range(8):
        k.e(f"""
        v_add_u32 v6, {c}, v5
        v_mul_u32_u24 v7, 3641, v6
        v_lshrrev_b32 v7, 16, v7
        v_mul_u32_u24 v8, 18, v7
        v_sub_u32 v8, v6, v8
        v_and_b32 v9, 7, v7
        v_lshrrev_b32 v7, 3, v7
        v_lshrrev_b32 v64, 3, v8
        v_lshlrev_b32 v64, 2, v64
        v_and_or_b32 v64, v8, 3, v64
        v_bfe_u32 v65, v8, 2, 1
        v_and_b32 v66, 6, v9
        v_add_u32 v66, v66, v65
        v_lshlrev_b32 v66, 4, v66
        v_and_b32 v67, 1, v9
        v_lshl_add_u32 v66, v67, 3, v66
        v_lshlrev_b32 v67, 4, v9
        v_lshl_add_u32 v67, v65, 3, v67
        v_cmp_gt_u32 vcc, 8, v7
        v_lshl_add_u32 v68, v9, 1, v8
        v_add_u32 v68, 112, v68
        v_cndmask_b32 v66, v67, v66, vcc
        v_add_u32 v66, v66, v64
        v_cmp_gt_u32 vcc, 16, v8
        v_mul_u32_u24 v69, {9*2*9}, v7
        v_mul_u32_u24 v70, 144, v7
        v_cndmask_b32 v66, v68, v66, vcc
        v_lshrrev_b32 v67, 4, v66
        v_add_u32 v69, v69, v67
        v_and_b32 v67, 15, v66
        v_lshlrev_b32 v67, 4, v67
        v_lshl_add_u32 v69, v69, 10, v67
        v_add_u32 v69, v69, v11
        v_cmp_gt_u32 vcc, 1728, v6
        v_add_u32 v70, v70, v66
        v_lshl_add_u32 v70, v70, 2, s31
        v_cndmask_b32 v{12+c}, v72, v69, vcc
        s_and_b64 vcc, vcc, s[56:57]
        s_nop 1
        v_cndmask_b32 v{20+c}, v72, v70, vcc
        """)

    k.label(P + "core")
    k.wait_all(lg=False)
    for c in range(8):
        for jp in range(4):
            k.e(f"v_perm_b32 v{64+4*c+jp}, v{32+4*(2*jp+1)+(c>>1)}, v{32+4*(2*jp)+(c>>1)}, s{36+(c&1)}")
        k.e(f"buffer_store_dwordx4 v[{64+4*c}:{67+4*c}], v{12+c}, s[8:11], 0 offen")
    for c in range(8):
        k.e(f"v_mfma_f32_16x16x32_bf16 v[{96+4*c}:{99+4*c}], v[28:31], v[{64+4*c}:{67+4*c}], 0")
    for c in range(8):
        k.e(f"buffer_store_dword v{96+4*c}, v{20+c}, s[8:11], 0 offen")
    k.e(f"s_endpgm")

    k.label(P + "x")
    k.e(f"""
    s_sub_u32 s16, s16, {T_X}
    s_mov_b32 s12, s40
    s_mov_b32 s13, s41
    s_mov_b32 s14, {2048*576*2}
    s_lshl_b32 s30, s16, 4
    v_add_u32 v5, s30, v2
    v_mul_u32_u24 v10, 1152, v5
    v_lshl_add_u32 v10, v3, 4, v10
    s_mul_i32 s30, s16, {18*1024}
    s_add_u32 s30, s30, {ABASE + XA}
    v_add_u32 v11, s30, v4
    v_mov_b32 v12, 0
    v_mov_b32 v13, 0
    s_lshl_b32 s31, s16, 9
    s_add_u32 s31, s31, {ABASE + STA}
    v_lshlrev_b32 v14, 3, v0
    """)
    for kb in range(18):
        k.vm(f"buffer_load_dwordx4 v[{32+4*kb}:{35+4*kb}], v10, s[12:15], 0 offen offset:{64*kb}", tag=("x", kb))
    for kb in range(18):
        k.wait(vm=("x", kb))
        if kb % 4 == 0 and kb:
            k.e(f"v_add_u32 v11, 4096, v11")
        k.vm(f"buffer_store_dwordx4 v[{32+4*kb}:{35+4*kb}], v11, s[8:11], 0 offen offset:{1024*(kb%4)}")
        for d in range(4):
            k.e(f"v_dot2c_f32_bf16 v12, v{32+4*kb+d}, v28")
            k.e(f"v_dot2c_f32_bf16 v13, v{32+4*kb+d}, v{32+4*kb+d}")
    k.e(f"""
    s_nop 2
    buffer_store_dwordx2 v[12:13], v14, s[8:11], s31 offen
    s_endpgm
    """)
    k.label(P + "z")
    k.e(f"""
    s_sub_u32 s16, s16, {T_Z}
    s_mul_i32 s30, s16, {LSTR}
    s_add_u32 s30, s30, {ABASE + CNT}
    v_lshlrev_b32 v5, 8, v0
    v_mov_b32 v6, 0
    buffer_store_dword v6, v5, s[8:11], s30 offen
    s_add_u32 s30, s30, 16384
    buffer_store_dword v6, v5, s[8:11], s30 offen
    s_add_u32 s30, s30, 16384
    buffer_store_dword v6, v5, s[8:11], s30 offen
    """)
    k.label(P + "end")
    k.e("s_endpgm")
    return k
```

```python
WQKVP = 0x0000000
WOP   = 0x0200000
W13P  = 0x0300000
W2P   = 0x0E00000
CSQ   = 0x1340000
CS13  = 0x1360000
W_END = 0x1420000
ABASE = 0x1500000
CNT   = 0x0000000
XA    = 0x0010000
XB    = 0x0250000
STA   = 0x0490000
STB   = 0x04A0000
QF    = 0x0540000
KF    = 0x0740000
QL    = 0x0940000
KL    = 0x0980000
VF    = 0x09C0000
VT    = 0x0BC0000
OB    = 0x0C00000
HB    = 0x0E40000
OL    = 0x2A40000
PART  = 0x2040000
LSTR  = 0x2A80000
WS_USED = ABASE + 2 * LSTR
WS_SIZE = 268435456
OOB = 0x7FFFFF00
C_QKV = 0
C_ATT = 4
C_WO  = 12
C_F1  = 20
C_F2  = 52
C_RED = 116
N_CNT = 132
```

```python
import os, struct
from asmlib import *
from layout import *
from k_prep import ws_srd, ffn_task_setup

SW = "s[8:11]"
SA = "s[12:15]"
LAY = 79
PS = 48
LDS_BYTES = 4 * 36864 + 2048
SC = "sc1"


def hexf(x):
    return "0x%08x" % struct.unpack("<I", struct.pack("<f", x))[0]


def r(b, n):
    return f"v[{b}:{b+n-1}]"


class Mega(Kern):
    uid = 0

    def lab(self, s):
        Mega.uid += 1
        return f"Lm{Mega.uid}_{s}"

    def lane_setup(self, half32=False):
        self.e(f"""
        v_mbcnt_lo_u32_b32 v0, -1, 0
        v_mbcnt_hi_u32_b32 v0, -1, v0
        v_lshlrev_b32 v1, 4, v0
        v_and_b32 v2, {31 if half32 else 15}, v0
        v_lshrrev_b32 v3, {5 if half32 else 4}, v0
        """)

    def dump(self, slot):
        if not Kern.STAMPS:
            return
        n = getattr(self, "nst", 0)
        self.e(f"""
        s_waitcnt lgkmcnt(0)
        s_lshl_b32 s100, s2, 3
        s_add_u32 s100, s100, s16
        s_lshl_b32 s100, s100, 6
        s_lshl_b32 s101, s{LAY}, 20
        s_add_u32 s100, s100, s101
        s_add_u32 s100, s100, {WS_USED + slot * 131072}
        s_mov_b64 exec, 1
        v_mov_b32 v13, 0
        """)
        for i in range(n):
            self.e(f"v_mov_b32 v14, s{Kern.STAMP_S + 2*i}")
            self.vm(f"buffer_store_dword v14, v13, {SW}, s100 offen offset:{4*i}")
        self.e("s_mov_b64 exec, -1")
        self.nst = 0

    def publish(self, ssig, slot=None):
        self.stamp()
        self.wait_all()
        self.stamp()
        L = self.lab("pub")
        self.e(f"""
        s_barrier
        s_cmp_lg_u32 s16, 0
        s_cbranch_scc1 {L}
        v_mov_b32 v13, 0
        v_mov_b32 v14, 1
        s_mov_b64 exec, 1
        buffer_atomic_add v14, v13, {SA}, s{ssig} offen sc1
        s_mov_b64 exec, -1
        """)
        self.label(L)
        if slot is not None:
            self.dump(slot)

    def await_(self, swait, mask, target, pre=None, skip_layer0=False):
        Lp, Lj, Ll, Ld = self.lab("p"), self.lab("j"), self.lab("l"), self.lab("d")
        q0 = list(self.vmq)
        self.e(f"""
        s_cmp_eq_u32 s16, 0
        s_cbranch_scc1 {Lp}
        """)
        if pre:
            pre()
        q1 = list(self.vmq)
        self.e(f"""
        s_barrier
        s_branch {Lj}
        """)
        self.label(Lp)
        if skip_layer0:
            self.e(f"""
            s_cmp_eq_u32 s{LAY}, 0
            s_cbranch_scc1 {Ld}
            """)
        self.e(f"""
        v_lshlrev_b32 v13, 8, v0
        s_mov_b32 s3, 0x40000
        s_mov_b64 exec, {mask}
        """)
        self.label(Ll)
        self.e(f"""
        buffer_load_dword v14, v13, {SA}, s{swait} offen sc1
        s_waitcnt vmcnt(0)
        v_cmp_gt_u32 vcc, {target}, v14
        s_sub_u32 s3, s3, 1
        s_cbranch_scc1 {Ld}
        s_nop 2
        s_cbranch_vccnz {Ll}
        """)
        self.label(Ld)
        self.e(f"""
        s_mov_b64 exec, -1
        s_barrier
        """)
        self.vmq = q0
        if pre:
            pre()
        assert self.vmq == q1
        self.label(Lj)
        self.stamp()


def reduce_g(k, a, t):
    for sw in ("v_permlane32_swap_b32", "v_permlane16_swap_b32"):
        k.e(f"""
        v_mov_b32 v{t}, v{a}
        v_mov_b32 v{t+1}, v{a+1}
        {sw} v{a}, v{t}
        {sw} v{a+1}, v{t+1}
        v_add_f32 v{a}, v{a}, v{t}
        v_add_f32 v{a+1}, v{a+1}, v{t+1}
        """)


def mean_rstd(k, s, mean, rstd, t):
    k.e(f"""
    v_mul_f32 v{mean}, {hexf(1.0/576)}, v{s}
    v_mul_f32 v{t}, {hexf(1.0/576)}, v{s+1}
    v_fma_f32 v{t}, -v{mean}, v{mean}, v{t}
    v_max_f32 v{t}, 0, v{t}
    v_add_f32 v{t}, {hexf(1e-5)}, v{t}
    v_rsq_f32 v{rstd}, v{t}
    """)


def resid_round(k, a, x, d, t):
    k.e(f"""
    v_cvt_pk_bf16_f32 v{d}, v{a[0]}, v{a[1]}
    v_cvt_pk_bf16_f32 v{d+1}, v{a[2]}, v{a[3]}
    v_lshlrev_b32 v{t}, 16, v{x}
    v_and_b32 v{t+1}, 0xffff0000, v{x}
    v_lshlrev_b32 v{t+2}, 16, v{x+1}
    v_and_b32 v{t+3}, 0xffff0000, v{x+1}
    v_lshlrev_b32 v{a[0]}, 16, v{d}
    v_and_b32 v{a[1]}, 0xffff0000, v{d}
    v_lshlrev_b32 v{a[2]}, 16, v{d+1}
    v_and_b32 v{a[3]}, 0xffff0000, v{d+1}
    v_add_f32 v{a[0]}, v{a[0]}, v{t}
    v_add_f32 v{a[1]}, v{a[1]}, v{t+1}
    v_add_f32 v{a[2]}, v{a[2]}, v{t+2}
    v_add_f32 v{a[3]}, v{a[3]}, v{t+3}
    v_cvt_pk_bf16_f32 v{d}, v{a[0]}, v{a[1]}
    v_cvt_pk_bf16_f32 v{d+1}, v{a[2]}, v{a[3]}
    """)


GSZ = 36864
CSOFF = 4 * GSZ
PDW = 4
NB = 6
ACC = 16
WFR = ACC + 72
ACT = WFR + 4 * NB
TMP = ACT + 64


def acc(tt, nt):
    return r(ACC + (tt * 9 + nt) * 4, 4)


def wfr(f):
    return r(WFR + (f % NB) * 4, 4)


def act(s, tt):
    return r(ACT + ((((s >> 1) & 3) * 2 + (s & 1)) * 2 + tt) * 4, 4)


def gb_setup(k):
    k.lane_setup()
    k.e(f"""
    s_and_b32 s17, s16, 3
    s_lshr_b32 s18, s16, 2
    s_mul_i32 s19, s18, 9216
    v_add_u32 v4, s19, v1
    v_add_u32 v5, {GSZ}, v4
    v_add_u32 v6, {2*GSZ}, v4
    v_add_u32 v7, {3*GSZ}, v4
    s_mul_i32 s20, s16, 4608
    s_mul_i32 s21, s16, 2304
    s_mov_b32 s22, -1
    s_mov_b32 s23, 0
    s_mov_b32 s24, 0xffff
    s_mov_b32 s25, 0
    """)


def gb_dma_ops(k, G, nsteps, sW, rot, tg="dma"):
    full = (2 * G + 1 < nsteps)
    src, dst = G * GSZ, ((G + rot) & 3) * GSZ
    sw = 20 if full else 21
    n = 4 if full else 2

    def piece(i):
        if i == 0:
            k.e(f"""
            s_add_u32 m0, s{sw}, {dst}
            s_add_u32 s26, s{sW}, s{sw}
            s_add_u32 s26, s26, {src}
            """)
        k.vm(f"buffer_load_dwordx4 v1, {SW}, s26 offen offset:{1024*i} {SC} lds", tag=(tg, G))

    def last():
        k.e(f"""
        s_add_u32 m0, m0, {1024*n}
        s_add_u32 s26, s26, {1024*n}
        s_mov_b64 exec, s[{22 if full else 24}:{23 if full else 25}]
        """)
        k.vm(f"buffer_load_dwordx4 v1, {SW}, s26 offen {SC} lds", tag=(tg, G))
        k.e("s_mov_b64 exec, -1")
    return [lambda i=i: piece(i) for i in range(n)] + [last]


def gb_act_ops(k, G, nsteps, sA, sB):
    def a(s, tt):
        sr = sB if tt else sA
        if s % 4 == 0 and s:
            k.e(f"s_add_u32 s{sr}, s{sr}, 4096")
        k.vm(f"buffer_load_dwordx4 {act(s,tt)}, v1, {SA}, s{sr} offen offset:{1024*(s%4)} {SC}", tag=("act", s))
    return [lambda s=s, tt=tt: a(s, tt) for s in (2 * G, 2 * G + 1) if s < nsteps for tt in range(2)]


def gb_main(k, nsteps, sW, sA, sB, swap, npre, rot, extra=None):
    NG = (nsteps + 1) // 2
    NF = nsteps * 9
    pend = []

    def rd(f):
        s, nt = divmod(f, 9)
        G = s >> 1
        if f % 18 == 0:
            while pend:
                pend.pop(0)()
            k.wait(vm=("dma", G))
            k.e("s_barrier")
            if G in (0, 4):
                k.stamp()
            if G + 2 < NG:
                if G + 2 >= npre:
                    pend.extend(gb_dma_ops(k, G + 2, nsteps, sW, rot))
                pend.extend(gb_act_ops(k, G + 2, nsteps, sA, sB))
            if extra and G in extra:
                pend.extend(extra[G])
        k.lg(f"ds_read_b128 {wfr(f)}, v{4+((G+rot)&3)} offset:{(s&1)*18432 + nt*1024}", tag=("w", f))

    for f in range(PDW):
        rd(f)
    for f in range(NF):
        s, nt = divmod(f, 9)
        if f + PDW < NF:
            rd(f + PDW)
        k.wait(vm=("act", s) if nt == 0 else None, lg=("w", f))
        for tt in range(2):
            c = "0" if s == 0 else acc(tt, nt)
            if swap:
                k.e(f"v_mfma_f32_16x16x32_bf16 {acc(tt,nt)}, {act(s,tt)}, {wfr(f)}, {c}")
            else:
                k.e(f"v_mfma_f32_16x16x32_bf16 {acc(tt,nt)}, {wfr(f)}, {act(s,tt)}, {c}")
        for _ in range(1 if len(pend) <= 14 else 2):
            if pend:
                pend.pop(0)()
    assert not pend
    k.stamp()


def gb_exchange(k):
    k.e(f"""
    s_mul_i32 s26, s16, 9216
    v_add_u32 v8, s26, v1
    s_xor_b32 s26, s16, 4
    s_mul_i32 s26, s26, 9216
    v_add_u32 v9, s26, v1
    s_barrier
    """)
    for nt in range(9):
        k.lg(f"ds_write_b128 v8, {acc(1,nt)} offset:{nt*1024}")
    k.wait_all(vm=False)
    k.e("s_barrier")
    for nt in range(9):
        k.lg(f"ds_read_b128 {acc(1,nt)}, v9 offset:{nt*1024}", tag=("x", nt))


def gb_xadd(k, nt):
    k.wait(lg=("x", nt))
    for i in range(4):
        a = ACC + nt * 4 + i
        k.e(f"v_add_f32 v{a}, v{a}, v{a+36}")


QSCALE = (18 ** -0.5) * 1.4426950408889634


def phase_qkv(k):
    CSP = TMP
    ST = TMP + 20
    Lend, Lv, Lpub = k.lab("qend"), k.lab("qv"), k.lab("qpub")
    k.e(f"""
    s_cmp_ge_u32 s2, 192
    s_cbranch_scc1 {Lend}
    """)
    k.stamp()
    gb_setup(k)
    k.e(f"""
    s_and_b32 s31, s2, 1
    s_lshl_b32 s31, s31, 3
    s_bfe_u32 s32, s2, 0x30003
    s_add_u32 s31, s31, s32
    s_lshr_b32 s32, s2, 6
    s_lshl_b32 s32, s32, 2
    s_bfe_u32 s33, s2, 0x20001
    s_add_u32 s32, s32, s33
    s_lshl_b32 s47, s33, 8
    s_add_u32 s47, s47, {CNT + C_QKV*256}
    s_mul_i32 s33, s32, {9*18432}
    s_add_u32 s33, s33, {WQKVP}
    s_lshl_b32 s34, s31, 3
    s_lshl_b32 s35, s17, 1
    s_add_u32 s34, s34, s35
    s_add_u32 s36, s34, s18
    s_xor_b32 s35, s18, 1
    s_add_u32 s37, s34, s35
    s_mul_i32 s35, s18, 9
    s_mul_i32 s38, s36, 18
    s_add_u32 s38, s38, s35
    s_lshl_b32 s38, s38, 10
    s_add_u32 s38, s38, {XA}
    s_mul_i32 s39, s37, 18
    s_add_u32 s39, s39, s35
    s_lshl_b32 s39, s39, 10
    s_add_u32 s39, s39, {XA}
    s_lshl_b32 s27, s31, 8
    s_add_u32 s27, s27, {CNT + C_RED*256}
    s_mul_i32 s40, s32, 576
    s_add_u32 s40, s40, {CSQ}
    s_lshl_b32 s41, s16, 6
    v_add_u32 v12, s41, v0
    v_lshlrev_b32 v10, 2, v12
    v_add_u32 v11, s40, v10
    v_cmp_gt_u32 vcc, 144, v12
    v_mov_b32 v12, {OOB}
    v_add_u32 v10, {CSOFF}, v10
    v_cndmask_b32 v11, v12, v11, vcc
    s_mov_b32 s42, 0
    s_lshl_b32 s41, s36, 9
    s_add_u32 s41, s41, {STA}
    v_lshlrev_b32 v12, 3, v0
    """)
    NPRE = 2
    k.vmq = [("dma", 0)] * 5 + [("dma", 1)] * 5
    k.await_(27, 1, 16, None, skip_layer0=True)
    for G in range(2):
        for o in gb_act_ops(k, G, 9, 38, 39):
            o()

    def csl(kb):
        k.vm(f"buffer_load_dword v{CSP+kb}, v11, {SW}, s42 offen", tag="cs")
        k.e(f"s_add_u32 s42, s42, {12*144*4}")

    def stl():
        k.vm(f"buffer_load_dwordx2 {r(ST,2)}, v12, {SA}, s41 offen {SC}", tag="cs")

    extra = {3: [lambda kb=kb: csl(kb) for kb in range(18)] + [stl]}

    def finish_cs():
        k.wait(vm="cs")
        for i in range(1, 18):
            k.e(f"v_add_f32 v{CSP}, v{CSP}, v{CSP+i}")
        k.lg(f"ds_write_b32 v10, v{CSP}")

    def stats_finish():
        reduce_g(k, ST, ST + 2)
        mean_rstd(k, ST, 12, 13, 14)

    vmq0, lgq0, nst0 = list(k.vmq), list(k.lgq), getattr(k, "nst", 0)
    k.e(f"""
    s_cmp_ge_u32 s32, 8
    s_cbranch_scc1 {Lv}
    """)
    CS = ACT
    gb_main(k, 9, 33, 38, 39, False, NPRE, 2, extra)
    finish_cs()
    gb_exchange(k)
    k.e(f"""
    v_lshlrev_b32 v8, 4, v3
    v_add_u32 v8, {CSOFF}, v8
    """)
    for nt in range(9):
        k.lg(f"ds_read_b128 {r(CS+4*nt,4)}, v8 offset:{nt*64}", tag=("cs", nt))
    k.e(f"""
    s_mov_b32 s42, {hexf(QSCALE)}
    s_cmp_lt_u32 s32, 4
    s_cselect_b32 s42, s42, 1.0
    s_cselect_b32 s43, {QF}, 0
    s_cselect_b32 s44, {QL}, 0
    s_cselect_b32 s45, 0, {KF}
    s_cselect_b32 s46, 0, {KL}
    s_add_u32 s43, s43, s45
    s_add_u32 s44, s44, s46
    s_and_b32 s45, s32, 3
    s_lshl_b32 s46, s45, 19
    s_add_u32 s43, s43, s46
    s_lshr_b32 s46, s36, 1
    s_lshl_b32 s46, s46, 10
    s_add_u32 s43, s43, s46
    s_and_b32 s46, s36, 1
    s_lshl_b32 s46, s46, 8
    s_add_u32 s43, s43, s46
    v_lshrrev_b32 v9, 1, v3
    v_lshlrev_b32 v9, 16, v9
    v_and_b32 v10, 1, v3
    v_lshl_add_u32 v9, v10, 9, v9
    v_lshl_add_u32 v9, v2, 4, v9
    s_lshl_b32 s46, s45, 16
    s_add_u32 s44, s44, s46
    s_lshl_b32 s46, s36, 7
    s_add_u32 s44, s44, s46
    v_lshlrev_b32 v10, 14, v3
    v_lshl_add_u32 v10, v2, 3, v10
    """)
    stats_finish()
    k.e("v_mul_f32 v13, s42, v13")
    for nt in range(9):
        gb_xadd(k, nt)
    for nt in range(9):
        k.wait(lg=("cs", nt))
        for i in range(4):
            a = ACC + nt * 4 + i
            k.e(f"v_fma_f32 v{a}, -v12, v{CS+4*nt+i}, v{a}")
            k.e(f"v_mul_f32 v{a}, v13, v{a}")
        a = ACC + nt * 4
        d = WFR + nt * 2
        k.e(f"v_cvt_pk_bf16_f32 v{d}, v{a}, v{a+1}")
        k.e(f"v_cvt_pk_bf16_f32 v{d+1}, v{a+2}, v{a+3}")
        if nt & 1:
            k.e(f"buffer_store_dwordx4 {r(d-2,4)}, v9, {SA}, s43 offen {SC}")
            k.e(f"s_add_u32 s43, s43, {2*65536}")
        if nt == 8:
            k.e(f"buffer_store_dwordx2 {r(d,2)}, v10, {SA}, s44 offen {SC}")
    k.e(f"s_branch {Lpub}")
    k.label(Lv)
    k.vmq, k.lgq, k.nst = vmq0, lgq0, nst0
    gb_main(k, 9, 33, 38, 39, True, NPRE, 2, extra)
    finish_cs()
    gb_exchange(k)
    k.e(f"""
    v_lshlrev_b32 v8, 2, v2
    v_add_u32 v8, {CSOFF}, v8
    """)
    for nt in range(9):
        k.lg(f"ds_read_b32 v{CS+nt}, v8 offset:{nt*64}", tag=("cs", nt))
    k.e(f"""
    s_sub_u32 s45, s32, 8
    s_lshl_b32 s43, s45, 19
    s_lshl_b32 s46, s36, 9
    s_add_u32 s43, s43, s46
    s_add_u32 s43, s43, {VF}
    s_lshl_b32 s44, s45, 16
    s_add_u32 s44, s44, s46
    s_add_u32 s44, s44, {VT}
    v_and_b32 v10, 31, v0
    v_lshlrev_b32 v10, 4, v10
    v_lshrrev_b32 v9, 1, v3
    v_lshl_add_u32 v9, v9, 16, v10
    v_lshlrev_b32 v11, 4, v3
    """)
    stats_finish()
    MEAN, RSTD = CSP, CSP + 4
    k.e("s_nop 0")
    for i in range(4):
        k.lg(f"ds_bpermute_b32 v{MEAN+i}, v11, v12 offset:{4*i}", tag="bp")
        k.lg(f"ds_bpermute_b32 v{RSTD+i}, v11, v13 offset:{4*i}", tag="bp")
    for nt in range(9):
        gb_xadd(k, nt)
    k.wait(lg="bp")
    for nt in range(9):
        for i in range(4):
            a = ACC + nt * 4 + i
            k.e(f"v_fma_f32 v{a}, -v{MEAN+i}, v{CS+nt}, v{a}")
            k.e(f"v_mul_f32 v{a}, v{RSTD+i}, v{a}")
        a = ACC + nt * 4
        d = WFR + nt * 2
        k.e(f"v_cvt_pk_bf16_f32 v{d}, v{a}, v{a+1}")
        k.e(f"v_cvt_pk_bf16_f32 v{d+1}, v{a+2}, v{a+3}")
        if nt == 8:
            k.e(f"v_mov_b32 v{d+2}, v{d}")
            k.e(f"v_mov_b32 v{d+3}, v{d+1}")
            d += 2
        if nt & 1 or nt == 8:
            k.e(f"v_permlane32_swap_b32 v{d-2}, v{d}")
            k.e(f"v_permlane32_swap_b32 v{d-1}, v{d+1}")
        if nt & 1:
            k.e(f"buffer_store_dwordx4 {r(d-2,4)}, v9, {SA}, s43 offen {SC}")
            k.e(f"s_add_u32 s43, s43, {2*65536}")
        elif nt == 8:
            k.e("s_mov_b64 exec, s[22:23]")
            k.e(f"buffer_store_dwordx4 {r(d-2,4)}, v10, {SA}, s44 offen {SC}")
            k.e("s_mov_b64 exec, -1")
    k.label(Lpub)
    k.publish(47, slot=0)
    k.label(Lend)
    k.vmq, k.lgq = [], []


ATX = 2 * GSZ
FLAGOFF = ATX + 8 * 3072
WOF = 184
W9 = 3 * GSZ
Q1, Q2, K1, K2, VV, PP, CM, SS, OO, NV = 16, 24, 28, 40, 48, 72, 88, 120, 152, 184


def phase_attn(k):
    k.stamp()
    k.lane_setup(half32=True)
    k.e(f"""
    s_and_b32 s17, s16, 3
    s_lshr_b32 s18, s16, 2
    s_and_b32 s19, s2, 7
    s_lshl_b32 s19, s19, 2
    s_bfe_u32 s20, s2, 0x20003
    s_add_u32 s19, s19, s20
    s_lshr_b32 s20, s2, 5
    s_lshl_b32 s21, s20, 3
    s_lshl_b32 s22, s17, 1
    s_add_u32 s21, s21, s22
    s_add_u32 s22, s21, s18
    s_xor_b32 s23, s18, 1
    s_add_u32 s23, s21, s23
    s_lshl_b32 s24, s19, 16
    s_lshr_b32 s25, s19, 1
    s_lshl_b32 s25, s25, 14
    s_and_b32 s26, s19, 1
    s_lshl_b32 s26, s26, 2
    s_add_u32 s25, s25, s26
    v_lshlrev_b32 v4, 3, v2
    s_lshr_b32 s41, s19, 3
    s_lshl_b32 s41, s41, 16
    s_and_b32 s42, s19, 7
    s_lshl_b32 s42, s42, 5
    s_add_u32 s41, s41, s42
    s_sub_u32 s41, s41, s24
    s_add_u32 s41, s41, {VT - VF - 256}
    v_mov_b32 v7, s41
    v_cmp_gt_u32 vcc, 16, v2
    v_lshlrev_b32 v5, 8, v3
    v_lshl_add_u32 v5, v2, 4, v5
    v_cndmask_b32 v7, v7, 0, vcc
    v_add_u32 v5, v5, v7
    s_mov_b32 s28, -1
    s_mov_b32 s29, 0
    s_mov_b32 s30, 0x3ffff
    s_mov_b32 s31, 0x3ffff
    s_mov_b32 s44, 0
    v_cmp_eq_u32 vcc, 18, v2
    v_cmp_eq_u32 s[32:33], 20, v2
    v_mov_b32 v6, 0x3f803f80
    s_or_b64 vcc, vcc, s[32:33]
    s_lshl_b32 s32, s22, 10
    s_add_u32 s32, s32, s24
    s_add_u32 s32, s32, {QF}
    s_lshl_b32 s33, s23, 10
    s_add_u32 s33, s33, s24
    s_add_u32 s33, s33, {QF}
    s_add_u32 s34, s24, {KF}
    s_lshl_b32 s35, s22, 8
    s_add_u32 s35, s35, s25
    s_add_u32 s35, s35, {QL}
    s_lshl_b32 s36, s23, 8
    s_add_u32 s36, s36, s25
    s_add_u32 s36, s36, {QL}
    s_add_u32 s37, s25, {KL}
    s_lshl_b32 s41, s18, 15
    s_add_u32 s45, s34, s41
    s_lshl_b32 s41, s18, 13
    s_add_u32 s46, s37, s41
    s_lshl_b32 s41, s18, 15
    s_add_u32 s47, s24, s41
    s_add_u32 s47, s47, {VF}
    v_cndmask_b32 v6, 0, v6, vcc
    v_mov_b32 v{PP+4}, 0
    v_mov_b32 v{PP+5}, 0
    s_lshr_b32 s27, s19, 3
    s_lshl_b32 s27, s27, 8
    s_add_u32 s27, s27, {CNT + C_QKV*256}
    s_lshl_b32 s26, s20, 8
    s_add_u32 s26, s26, {CNT + C_ATT*256}
    """)
    for i in range(4):
        k.e(f"v_mov_b32 v{Q2+i}, 0")
    for i in range(6):
        k.e(f"v_mov_b32 v{K2+i}, 0")
    for i in range(24):
        k.e(f"v_mov_b32 v{VV+i}, v6")
    PA = NV
    PD = PA + 8
    PO = PD + 32
    PN = PO + 8
    PC = PN + 4
    Lnp = k.lab("anp")
    k.e(f"""
    s_cmp_lg_u32 s{LAY}, 0
    s_cbranch_scc1 {Lnp}
    s_lshl_b32 s{PS+28}, s2, 3
    s_add_u32 s{PS+28}, s{PS+28}, s16
    s_mov_b32 s{PS+29}, 0x05040100
    s_mov_b32 s{PS+30}, 0x07060302
    """)
    ffn_task_setup(k, k.lab("t_"), PS + 28, PS, PA, 0)
    for i in range(4):
        k.e(f"v_mov_b32 v{PN+i}, 0x3f803f80")
    k.label(Lnp)
    k.e(f"""
    s_and_b32 s41, s2, 1
    s_lshl_b32 s41, s41, 1
    s_lshr_b32 s42, s2, 7
    s_add_u32 s41, s41, s42
    s_mul_i32 s41, s41, {9*18*1024}
    s_add_u32 s41, s41, {WOP}
    s_mul_i32 s17, s16, {18*1024}
    s_add_u32 s17, s17, s41
    s_mul_i32 s20, s16, 2304
    s_add_u32 s21, s41, s20
    s_add_u32 s21, s21, {8*18*1024}
    """)
    k.await_(27, 1, 48)
    k.vm(f"buffer_load_dwordx4 {r(Q1,4)}, v1, {SA}, s32 offen {SC}")
    k.vm(f"buffer_load_dwordx4 {r(Q1+4,4)}, v1, {SA}, s33 offen {SC}")
    k.vm(f"buffer_load_dwordx4 {r(PP,4)}, v1, {SA}, s34 offen {SC}")
    k.e("s_mov_b64 exec, s[28:29]")
    k.vm(f"buffer_load_dword v{Q2}, v4, {SA}, s35 offen {SC}")
    k.vm(f"buffer_load_dword v{Q2+2}, v4, {SA}, s36 offen {SC}")
    k.vm(f"buffer_load_dword v{PP+4}, v4, {SA}, s37 offen {SC}", tag="q")
    k.e("s_mov_b64 exec, -1")

    def load_k(kt):
        b = kt % 3
        k.vm(f"buffer_load_dwordx4 {r(K1+4*b,4)}, v1, {SA}, s38 offen {SC}", tag=("k", kt))
        k.e("s_mov_b64 exec, s[28:29]")
        k.vm(f"buffer_load_dword v{K2+2*b}, v4, {SA}, s39 offen {SC}", tag=("k", kt))
        k.e("s_mov_b64 exec, -1")
        k.e("s_add_u32 s38, s38, 1024")
        k.e("s_add_u32 s39, s39, 256")

    def load_v(kt):
        b = kt % 3
        k.e("s_mov_b64 exec, s[30:31]")
        k.vm(f"buffer_load_dwordx4 {r(VV+8*b,4)}, v5, {SA}, s40 offen {SC}", tag=("v", kt))
        k.vm(f"buffer_load_dwordx4 {r(VV+8*b+4,4)}, v5, {SA}, s40 offen offset:512 {SC}", tag=("v", kt))
        k.e("s_mov_b64 exec, -1")
        k.e("s_add_u32 s40, s40, 1024")

    def start_streams():
        k.e("""
        s_mov_b32 s38, s45
        s_mov_b32 s39, s46
        s_mov_b32 s40, s47
        """)
        for kt in range(3):
            load_k(kt)
            load_v(kt)

    start_streams()
    k.wait(vm="q")
    for qt in range(2):
        k.e(f"v_mfma_f32_32x32x16_bf16 {r(SS+16*qt,16)}, {r(PP,4)}, {r(Q1+4*qt,4)}, 0")
        k.e(f"v_mfma_f32_32x32x8_bf16 {r(SS+16*qt,16)}, {r(PP+4,2)}, {r(Q2+2*qt,2)}, {r(SS+16*qt,16)}")
    for qt in range(2):
        s = SS + 16 * qt
        k.e(f"v_max3_f32 v{8+qt}, v{s}, v{s+1}, v{s+2}")
        for i in range(3, 15, 2):
            k.e(f"v_max3_f32 v{8+qt}, v{8+qt}, v{s+i}, v{s+i+1}")
        k.e(f"v_max_f32 v{8+qt}, v{8+qt}, v{s+15}")
    vmq_start = list(k.vmq)
    Lset, Lplain, Ltail, Lfb, Lfl, Ldone = (k.lab(x) for x in ("setmax", "plain", "tail", "fb", "fbl", "adone"))
    k.label(Lset)
    k.e(f"""
    v_mov_b32 v10, v8
    v_mov_b32 v11, v9
    s_nop 0
    v_permlane32_swap_b32 v8, v10
    v_permlane32_swap_b32 v9, v11
    v_max_f32 v8, v8, v10
    v_max_f32 v9, v9, v11
    """)
    for i in range(16):
        k.e(f"v_sub_f32 v{CM+i}, 0, v8")
    NU = 64

    def qk(u, part):
        kt, qt = u >> 1, u & 1
        b = kt % 3
        s = r(SS + 16 * (u & 1), 16)
        if part == 0:
            if qt == 0:
                k.wait(vm=("k", kt))
            k.e(f"v_mfma_f32_32x32x16_bf16 {s}, {r(K1+4*b,4)}, {r(Q1+4*qt,4)}, {r(CM+16*qt,16)}")
        else:
            k.e(f"v_mfma_f32_32x32x8_bf16 {s}, {r(K2+2*b,2)}, {r(Q2+2*qt,2)}, {s}")

    def pv(u, part):
        kt, qt = u >> 1, u & 1
        b = kt % 3
        o = r(OO + 16 * qt, 16)
        if part == 0 and qt == 0:
            k.wait(vm=("v", kt))
        c = "0" if (kt == 0 and part == 0) else o
        k.e(f"v_mfma_f32_32x32x16_bf16 {o}, {r(VV+8*b+4*part,4)}, {r(PP+8*(u&1)+4*part,4)}, {c}")

    qk(0, 0)
    qk(0, 1)
    for i in range(16):
        k.e(f"v_sub_f32 v{CM+16+i}, 0, v9")
    k.stamp()

    def main(prep):
        PU0 = 42
        wo_ops = []

        def w9():
            k.e(f"s_add_u32 m0, s20, {W9}")
            k.e("s_mov_b32 s43, s17")
            k.vm(f"buffer_load_dwordx4 v1, {SW}, s21 offen lds")
            k.vm(f"buffer_load_dwordx4 v1, {SW}, s21 offen offset:1024 lds")
            k.e("s_mov_b64 exec, 0xffff")
            k.vm(f"buffer_load_dwordx4 v1, {SW}, s21 offen offset:2048 lds")
            k.e("s_mov_b64 exec, -1")

        def wl(kb):
            if kb % 4 == 0 and kb:
                k.e("s_add_u32 s43, s43, 4096")
            k.vm(f"buffer_load_dwordx4 {r(WOF+4*kb,4)}, v1, {SW}, s43 offen offset:{1024*(kb%4)}")
        wo_ops = [w9] + [lambda kb=kb: wl(kb) for kb in range(18)]
        for u in range(NU):
            if u >= 52:
                for _ in range(2):
                    if wo_ops:
                        wo_ops.pop(0)()
            s = SS + 16 * (u & 1)
            p = PP + 8 * (u & 1)
            ops = []
            for i in range(16):
                ops.append(f"v_exp_f32 v{s+i}, v{s+i}")
                if i >= 3 and i % 2 == 1:
                    j = (i - 3) // 2
                    ops.append(f"v_cvt_pk_bf16_f32 v{p+j}, v{s+2*j}, v{s+2*j+1}")
            ops.append(f"v_cvt_pk_bf16_f32 v{p+7}, v{s+14}, v{s+15}")
            kt = u >> 1
            if u & 1:
                if kt + 3 < 32:
                    load_k(kt + 3)
                if kt >= 1 and kt + 2 < 32:
                    load_v(kt + 2)
            if prep:
                if u % 5 == 1 and u // 5 < 8:
                    j = u // 5
                    k.vm(f"buffer_load_dwordx4 {r(PD+4*j,4)}, v{PA}, s[{PS}:{PS+3}], s{PS+4+j} offen", tag="pd")
                c = u - PU0
                if 0 <= c < 8:
                    k.wait(vm="pd")
                    o = PO + 4 * (c & 1)
                    for jp in range(4):
                        k.e(f"v_perm_b32 v{o+jp}, v{PD+4*(2*jp+1)+(c>>1)}, v{PD+4*(2*jp)+(c>>1)}, s{PS+29+(c&1)}")
                    k.vm(f"buffer_store_dwordx4 {r(o,4)}, v{PA+1+(c>>2)}, {SW}, s{PS+12+(c&3)} offen {SC}")
                if 1 <= c < 9:
                    k.vm(f"buffer_store_dword v{PC+4*((c-1)&1)}, v{PA+3}, {SW}, 0 offen offset:{128*(c-1)} {SC}")
                if 0 <= c < 8:
                    k.e(f"v_mfma_f32_16x16x32_bf16 {r(PC+4*(c&1),4)}, {r(PN,4)}, {r(PO+4*(c&1),4)}, 0")
            ms = []
            if u + 1 < NU:
                ms += [lambda: qk(u + 1, 0), lambda: qk(u + 1, 1)]
            if u >= 1:
                ms += [lambda: pv(u - 1, 0), lambda: pv(u - 1, 1)]
            pos = {0: 0, 5: 1, 11: 2, 17: 3}
            for i, o in enumerate(ops):
                if i in pos and pos[i] < len(ms):
                    ms[pos[i]]()
                k.e(o)
        pv(NU - 1, 0)
        pv(NU - 1, 1)

    q0 = list(k.vmq)
    k.e(f"""
    s_or_b32 s41, s{LAY}, s44
    s_cbranch_scc1 {Lplain}
    """)
    main(True)
    k.e(f"s_branch {Ltail}")
    k.label(Lplain)
    k.vmq = q0
    main(False)
    k.label(Ltail)
    k.vmq = []
    k.stamp()
    k.e(f"""
    v_cmp_eq_u32 vcc, 0, v3
    s_mul_i32 s41, s16, 3072
    s_add_u32 s41, s41, {ATX}
    v_add_u32 v12, s41, v1
    s_xor_b32 s41, s16, 4
    s_mul_i32 s41, s41, 3072
    s_add_u32 s41, s41, {ATX}
    v_add_u32 v13, s41, v1
    s_lshl_b32 s41, s16, 2
    s_add_u32 s41, s41, {FLAGOFF}
    v_mov_b32 v11, s41
    v_mov_b32 v10, {hexf(2.0**60)}
    v_cndmask_b32 v8, v{OO+8}, v{OO+10}, vcc
    v_cndmask_b32 v9, v{OO+24}, v{OO+26}, vcc
    """)
    for i in range(3):
        k.lg(f"ds_write_b128 v12, {r(OO+16+4*i,4)} offset:{1024*i}")
    k.e(f"""
    v_cmp_nlt_f32 s[32:33], v8, v10
    v_cmp_nlt_f32 s[34:35], v9, v10
    s_or_b64 s[32:33], s[32:33], s[34:35]
    s_cmp_lg_u64 s[32:33], 0
    s_cselect_b32 s41, 1, 0
    v_mov_b32 v10, s41
    """)
    k.lg(f"ds_write_b32 v11, v10")
    k.e(f"""
    v_mov_b32 v11, {FLAGOFF}
    s_lshl_b32 s41, s22, 1
    s_mul_i32 s41, s41, {18*1024}
    s_add_u32 s41, s41, {OB}
    s_lshr_b32 s42, s19, 1
    s_lshl_b32 s42, s42, 10
    s_and_b32 s43, s19, 1
    s_lshl_b32 s43, s43, 9
    s_add_u32 s42, s42, s43
    s_add_u32 s42, s42, s41
    v_lshrrev_b32 v14, 4, v2
    v_mul_u32_u24 v14, {18*1024}, v14
    v_and_b32 v15, 15, v2
    v_lshl_add_u32 v14, v15, 4, v14
    v_lshl_add_u32 v15, v3, 8, v14
    v_lshlrev_b32 v14, 2, v2
    s_lshl_b32 s41, s19, 13
    s_lshl_b32 s43, s22, 7
    s_add_u32 s41, s41, s43
    s_add_u32 s41, s41, {OL}
    """)
    k.wait_all(vm=False)
    k.e("s_barrier")
    k.lg(f"ds_read_b128 {r(SS,4)}, v11")
    k.lg(f"ds_read_b128 {r(SS+4,4)}, v11 offset:16")
    for i in range(3):
        k.lg(f"ds_read_b128 {r(OO+16+4*i,4)}, v13 offset:{1024*i}")
    k.wait_all(vm=False)
    k.e(f"""
    v_or3_b32 v10, v{SS}, v{SS+1}, v{SS+2}
    v_or3_b32 v10, v10, v{SS+3}, v{SS+4}
    v_or3_b32 v10, v10, v{SS+5}, v{SS+6}
    v_or_b32 v10, v10, v{SS+7}
    v_add_f32 v{OO+8}, v{OO+8}, v{OO+24}
    v_readfirstlane_b32 s43, v10
    v_add_f32 v{OO+10}, v{OO+10}, v{OO+26}
    s_andn2_b32 s43, s43, s44
    s_cmp_lg_u32 s43, 0
    s_cbranch_scc1 {Lfb}
    v_cndmask_b32 v8, v{OO+8}, v{OO+10}, vcc
    v_rcp_f32 v8, v8
    """)
    for i in (0, 1, 2, 3, 4, 5, 6, 7, 9):
        k.e(f"v_add_f32 v{OO+i}, v{OO+i}, v{OO+16+i}")
    for i in range(10):
        k.e(f"v_mul_f32 v{OO+i}, v{OO+i}, v8")
    for i in range(5):
        k.e(f"v_cvt_pk_bf16_f32 v{PP+i}, v{OO+2*i}, v{OO+2*i+1}")
    k.e(f"""
    buffer_store_dwordx4 {r(PP,4)}, v15, {SA}, s42 offen {SC}
    s_mov_b64 exec, s[28:29]
    buffer_store_dword v{PP+4}, v14, {SA}, s41 offen {SC}
    s_mov_b64 exec, -1
    s_branch {Ldone}
    """)
    k.label(Lfb)
    k.e(f"""
    s_mov_b32 s44, 1
    s_mov_b32 s38, s45
    s_mov_b32 s39, s46
    s_mov_b32 s41, 32
    v_mov_b32 v8, 0xff800000
    v_mov_b32 v9, 0xff800000
    """)
    k.label(Lfl)
    k.e(f"""
    buffer_load_dwordx4 {r(K1,4)}, v1, {SA}, s38 offen {SC}
    s_mov_b64 exec, s[28:29]
    buffer_load_dword v{K2}, v4, {SA}, s39 offen {SC}
    s_mov_b64 exec, -1
    s_add_u32 s38, s38, 1024
    s_add_u32 s39, s39, 256
    s_waitcnt vmcnt(0)
    """)
    for qt in range(2):
        k.e(f"v_mfma_f32_32x32x16_bf16 {r(SS+16*qt,16)}, {r(K1,4)}, {r(Q1+4*qt,4)}, 0")
        k.e(f"v_mfma_f32_32x32x8_bf16 {r(SS+16*qt,16)}, {r(K2,2)}, {r(Q2+2*qt,2)}, {r(SS+16*qt,16)}")
    for qt in range(2):
        s = SS + 16 * qt
        for i in range(0, 16, 2):
            k.e(f"v_max3_f32 v{8+qt}, v{8+qt}, v{s+i}, v{s+i+1}")
    k.e(f"""
    s_sub_u32 s41, s41, 1
    s_cmp_lg_u32 s41, 0
    s_cbranch_scc1 {Lfl}
    s_barrier
    ds_write_b64 v12, v[8:9]
    s_waitcnt lgkmcnt(0)
    s_barrier
    ds_read_b64 v[10:11], v13
    s_waitcnt lgkmcnt(0)
    v_max_f32 v8, v8, v11
    v_max_f32 v9, v9, v10
    s_barrier
    """)
    k.vmq = []
    start_streams()
    assert k.vmq == vmq_start
    k.e(f"s_branch {Lset}")
    k.label(Ldone)
    k.vmq, k.lgq = [], []
    k.publish(26, slot=1)


def phase_wo(k):
    WF, OF, AC, XR = WOF, 88, 112, 124
    DD, TT = 132, 136
    OT = 2 * GSZ
    k.stamp()
    k.lane_setup()
    k.e(f"""
    s_bfe_u32 s17, s2, 0x20001
    s_lshl_b32 s17, s17, 4
    s_bfe_u32 s18, s2, 0x40003
    s_add_u32 s17, s17, s18
    s_and_b32 s18, s2, 1
    s_lshl_b32 s18, s18, 1
    s_lshr_b32 s19, s2, 7
    s_add_u32 s18, s18, s19
    s_mul_i32 s19, s18, 9
    s_add_u32 s31, s19, 8
    s_add_u32 s19, s19, s16
    s_mul_i32 s42, s17, 36864
    s_lshr_b32 s21, s16, 2
    s_mul_i32 s21, s21, 18432
    s_and_b32 s24, s16, 3
    s_lshl_b32 s24, s24, 12
    s_add_u32 s21, s21, s24
    s_add_u32 s43, s42, s21
    s_add_u32 s43, s43, {OB}
    s_lshl_b32 s32, s16, 15
    s_lshl_b32 s33, s17, 7
    s_add_u32 s32, s32, s33
    s_add_u32 s32, s32, {OL}
    s_lshl_b32 s33, s16, 8
    s_add_u32 s33, s33, {OT + 16384}
    v_and_b32 v7, 3, v0
    v_lshlrev_b32 v7, 13, v7
    v_and_b32 v8, 60, v0
    v_add_u32 v7, v7, v8
    s_lshl_b32 s24, s19, 9
    s_add_u32 s24, s24, s42
    v_lshrrev_b32 v4, 1, v3
    v_lshlrev_b32 v4, 8, v4
    v_lshl_add_u32 v4, v2, 4, v4
    v_and_b32 v5, 1, v3
    v_mul_u32_u24 v8, 18432, v5
    v_add_u32 v8, v8, v4
    v_lshl_add_u32 v4, v5, 3, v4
    s_add_u32 s25, s24, {XA}
    s_add_u32 s27, s24, {XB}
    s_and_b32 s34, s16, 1
    s_mul_i32 s34, s34, 18432
    s_lshl_b32 s35, s31, 9
    s_add_u32 s35, s35, s42
    s_add_u32 s35, s35, s34
    s_add_u32 s36, s35, {XB}
    s_add_u32 s35, s35, {XA}
    s_add_u32 s34, s34, {OT}
    v_add_u32 v6, s34, v1
    v_add_u32 v5, {OT}, v1
    v_add_u32 v9, {W9}, v1
    s_lshr_b32 s37, s17, 3
    s_lshl_b32 s38, 1, s37
    s_cmp_eq_u32 s{LAY}, 0
    s_cselect_b32 s38, 0xff, s38
    s_mov_b32 s39, 0
    s_lshl_b32 s37, s37, 8
    s_add_u32 s37, s37, {CNT + C_WO*256}
    s_mov_b32 s40, {CNT + C_ATT*256}
    s_mul_i32 s29, s17, 9216
    s_add_u32 s29, s29, {STB}
    s_lshl_b32 s30, s31, 8
    s_add_u32 s41, s29, s30
    s_and_b32 s30, s16, 1
    s_lshl_b32 s30, s30, 3
    s_add_u32 s41, s41, s30
    s_lshl_b32 s30, s19, 8
    s_add_u32 s29, s29, s30
    s_and_b32 s44, s2, 3
    s_lshl_b32 s44, s44, 3
    s_bfe_u32 s45, s2, 0x30003
    s_add_u32 s44, s44, s45
    s_mul_i32 s44, s44, {9*GSZ}
    s_add_u32 s44, s44, {W13P}
    s_mul_i32 s20, s16, 4608
    s_mov_b32 s22, -1
    s_mov_b32 s23, 0
    """)

    def pre():
        k.vm(f"buffer_load_dwordx4 {r(XR,4)}, v8, {SA}, s25 offen {SC}", tag="x")
        k.vm(f"buffer_load_dwordx2 {r(XR+4,2)}, v4, {SA}, s35 offen {SC}", tag="x")
    k.await_(40, "s[38:39]", 32, pre)
    k.e(f"s_add_u32 m0, s21, {OT}")
    k.e("s_nop 0")
    for i in range(4):
        k.vm(f"buffer_load_dwordx4 v1, {SA}, s43 offen offset:{1024*i} {SC} lds", tag="o")
    k.e(f"s_mov_b32 m0, s33")
    k.e("s_nop 0")
    k.vm(f"buffer_load_dword v7, {SA}, s32 offen {SC} lds", tag="o")
    k.e(f"s_add_u32 m0, s33, 18432")
    k.e(f"s_add_u32 s32, s32, 64")
    k.vm(f"buffer_load_dword v7, {SA}, s32 offen {SC} lds", tag="o")
    for G in range(2):
        for o in gb_dma_ops(k, G, 18, 44, 0, "f1"):
            o()
    k.e(f"v_mov_b32 v14, 0x3f803f80")
    k.wait(vm="o")
    k.e("s_barrier")
    k.stamp()

    def rd(f):
        kb, tt = f >> 1, f & 1
        k.lg(f"ds_read_b128 {r(OF+4*(f%6),4)}, v5 offset:{tt*18432 + kb*1024}", tag=("o", f))

    for f in range(4):
        rd(f)
    for f in range(36):
        kb, tt = f >> 1, f & 1
        if f + 4 < 36:
            rd(f + 4)
        k.wait(lg=("o", f))
        c = "0" if kb == 0 else r(AC + 4 * tt, 4)
        k.e(f"v_mfma_f32_16x16x32_bf16 {r(AC+4*tt,4)}, {r(WF+4*kb,4)}, {r(OF+4*(f%6),4)}, {c}")
    L9 = k.lab("w9")
    k.e(f"""
    s_cmp_ge_u32 s16, 2
    s_cbranch_scc1 {L9}
    """)
    for kb in range(18):
        k.lg(f"ds_read_b128 {r(WF+4*kb,4)}, v9 offset:{kb*1024}", tag=("a", kb))
        k.lg(f"ds_read_b128 {r(16+4*kb,4)}, v6 offset:{kb*1024}", tag=("a", kb))
        if kb >= 3:
            j = kb - 3
            k.wait(lg=("a", j))
            k.e(f"v_mfma_f32_16x16x32_bf16 {r(AC+8,4)}, {r(WF+4*j,4)}, {r(16+4*j,4)}, {'0' if j == 0 else r(AC+8,4)}")
    for j in range(15, 18):
        k.wait(lg=("a", j))
        k.e(f"v_mfma_f32_16x16x32_bf16 {r(AC+8,4)}, {r(WF+4*j,4)}, {r(16+4*j,4)}, {r(AC+8,4)}")
    resid_round(k, [AC + 8 + i for i in range(4)], XR + 4, DD, TT)
    k.e(f"""
    buffer_store_dwordx2 {r(DD,2)}, v4, {SA}, s36 offen {SC}
    v_mov_b32 v10, 0
    v_mov_b32 v11, 0
    v_dot2c_f32_bf16 v10, v{DD}, v14
    v_dot2c_f32_bf16 v11, v{DD}, v{DD}
    v_dot2c_f32_bf16 v10, v{DD+1}, v14
    v_dot2c_f32_bf16 v11, v{DD+1}, v{DD+1}
    s_nop 2
    """)
    reduce_g(k, 10, 12)
    k.e(f"""
    s_mov_b64 exec, 0xffff
    buffer_store_dwordx2 v[10:11], v1, {SA}, s41 offen {SC}
    s_mov_b64 exec, -1
    """)
    k.label(L9)
    k.lgq = []
    for i in range(4):
        k.e(f"v_permlane16_swap_b32 v{AC+i}, v{AC+4+i}")
    resid_round(k, [AC + i for i in range(4)], XR, DD, TT)
    resid_round(k, [AC + 4 + i for i in range(4)], XR + 2, DD + 2, TT)
    k.e(f"""
    buffer_store_dwordx4 {r(DD,4)}, v8, {SA}, s27 offen {SC}
    v_mov_b32 v{TT}, 0
    v_mov_b32 v{TT+1}, 0
    """)
    for i in range(4):
        k.e(f"v_dot2c_f32_bf16 v{TT}, v{DD+i}, v14")
        k.e(f"v_dot2c_f32_bf16 v{TT+1}, v{DD+i}, v{DD+i}")
    k.e(f"""
    s_nop 2
    v_mov_b32 v{TT+2}, v{TT}
    v_mov_b32 v{TT+3}, v{TT+1}
    v_permlane32_swap_b32 v{TT}, v{TT+2}
    v_permlane32_swap_b32 v{TT+1}, v{TT+3}
    v_add_f32 v{TT}, v{TT}, v{TT+2}
    v_add_f32 v{TT+1}, v{TT+1}, v{TT+3}
    v_mov_b32 v{TT+2}, v{TT}
    v_mov_b32 v{TT+3}, v{TT+1}
    v_permlane16_swap_b32 v{TT}, v{TT+2}
    v_permlane16_swap_b32 v{TT+1}, v{TT+3}
    s_mov_b64 exec, 0xffff
    buffer_store_dwordx4 {r(TT,4)}, v1, {SA}, s29 offen {SC}
    s_mov_b64 exec, -1
    """)
    k.publish(37, slot=2)


STG = 36864
F1_CS = 4 * STG


def phase_ffn1(k):
    XF = 16
    AC = XF + 144
    WF = AC + 48
    CV = WF + 24
    HP = CV + 8
    TM = HP + 8
    NM = 8

    def xf(tt, kb):
        return r(XF + (tt * 18 + kb) * 4, 4)

    def ac(st, tt, mt):
        return AC + ((st * 2 + tt) * 2 + mt) * 4

    k.stamp()
    k.lane_setup()
    k.e(f"""
    v_mov_b32 v4, v1
    v_add_u32 v5, {STG}, v1
    v_add_u32 v6, {2*STG}, v1
    v_add_u32 v7, {3*STG}, v1
    s_and_b32 s17, s2, 3
    s_lshl_b32 s40, s17, 8
    s_lshl_b32 s17, s17, 3
    s_bfe_u32 s18, s2, 0x30003
    s_add_u32 s17, s17, s18
    s_bfe_u32 s18, s2, 0x10002
    s_lshl_b32 s18, s18, 2
    s_lshr_b32 s19, s2, 6
    s_add_u32 s18, s18, s19
    s_lshl_b32 s39, s18, 10
    s_add_u32 s40, s40, s39
    s_add_u32 s40, s40, {CNT + C_F1*256}
    s_lshl_b32 s39, s18, 8
    s_add_u32 s39, s39, {CNT + C_WO*256}
    s_lshl_b32 s19, s18, 4
    s_lshl_b32 s20, s16, 1
    s_add_u32 s19, s19, s20
    s_mul_i32 s20, s16, 4608
    s_mul_i32 s35, s17, {9*STG}
    s_add_u32 s35, s35, {W13P}
    s_add_u32 s21, s35, s20
    s_mov_b32 s22, -1
    s_mov_b32 s23, 0
    s_mul_i32 s24, s19, {18*1024}
    s_add_u32 s24, s24, {XB}
    s_add_u32 s25, s24, {18*1024}
    s_mul_i32 s28, s17, {9*128}
    s_add_u32 s28, s28, {CS13}
    s_lshl_b32 s29, s16, 6
    v_add_u32 v8, s29, v0
    v_lshlrev_b32 v12, 2, v8
    v_add_u32 v9, s28, v12
    v_cmp_gt_u32 vcc, 288, v8
    v_mov_b32 v8, {OOB}
    s_mov_b32 s29, 0
    v_cndmask_b32 v9, v8, v9, vcc
    s_mul_i32 s30, s19, {144*1024}
    s_add_u32 s30, s30, {HB}
    s_lshr_b32 s31, s17, 1
    s_mul_i32 s31, s31, 9216
    s_add_u32 s30, s30, s31
    s_and_b32 s31, s17, 1
    s_lshl_b32 s32, s31, 12
    s_add_u32 s33, s30, s32
    s_add_u32 s34, s33, {144*1024}
    s_lshl_b32 s31, s31, 9
    s_add_u32 s30, s30, s31
    s_add_u32 s30, s30, 8192
    v_lshlrev_b32 v15, 4, v3
    v_add_u32 v15, {F1_CS}, v15
    s_mul_i32 s27, s19, 4608
    s_add_u32 s27, s27, {STB}
    v_and_b32 v10, 1, v3
    v_mul_u32_u24 v10, {144*1024}, v10
    v_lshrrev_b32 v3, 1, v3
    v_lshl_add_u32 v3, v3, 8, v10
    v_lshl_add_u32 v3, v2, 4, v3
    s_lshr_b32 s41, s2, 6
    s_lshl_b32 s41, s41, 2
    s_and_b32 s42, s2, 3
    s_add_u32 s41, s41, s42
    s_mul_i32 s41, s41, {18*18432}
    s_add_u32 s41, s41, {W2P}
    """)

    def dma_ops(t):
        def piece(i):
            if i == 0:
                k.e(f"""
                s_add_u32 m0, s20, {(t&3)*STG}
                s_add_u32 s26, s21, {t*STG}
                """)
            k.vm(f"buffer_load_dwordx4 v1, {SW}, s26 offen offset:{1024*i} {SC} lds", tag=("dma", t))

        def last():
            k.e(f"""
            s_add_u32 m0, m0, 4096
            s_add_u32 s26, s26, 4096
            s_mov_b64 exec, s[22:23]
            """)
            k.vm(f"buffer_load_dwordx4 v1, {SW}, s26 offen {SC} lds", tag=("dma", t))
            k.e("s_mov_b64 exec, -1")
        return [lambda i=i: piece(i) for i in range(4)] + [last]

    def x_ops(kb):
        def one(tt):
            if kb % 4 == 0 and kb:
                k.e(f"s_add_u32 s{24+tt}, s{24+tt}, 4096")
            k.vm(f"buffer_load_dwordx4 {xf(tt,kb)}, v1, {SA}, s{24+tt} offen offset:{1024*(kb%4)} {SC}", tag=("x", kb))
        return [lambda tt=tt: one(tt) for tt in range(2)]

    CSP = ac(2, 0, 0)
    cs_regs = list(range(CSP, CSP + 16)) + [CV, CV + 1]

    def cs_ops():
        def one(kb):
            k.vm(f"buffer_load_dword v{cs_regs[kb]}, v9, {SW}, s29 offen {SC}", tag="cs")
            k.e(f"s_add_u32 s29, s29, {288*128}")
        return [lambda kb=kb: one(kb) for kb in range(18)]

    def st_ops(half):
        def one(i):
            if i % 4 == 0 and i:
                k.e(f"s_add_u32 s27, s27, 4096")
            k.vm(f"buffer_load_dwordx4 {r(CV+4+4*(i%5),4)}, v1, {SA}, s27 offen offset:{1024*(i%4)} {SC}", tag="st")
        return [lambda i=i: one(i) for i in (range(5) if half == 0 else range(5, 9))]

    def pre():
        for o in cs_ops():
            o()
    k.await_(39, 1, 32, pre)
    k.e(f"v_add_u32 v14, {F1_CS}, v12")

    cnt = {}
    for tg in k.vmq:
        cnt[tg] = cnt.get(tg, 0) + 1
    _vm = k.vm

    def vm_cnt(s, tag=None):
        _vm(s, tag)
        cnt[tag] = cnt.get(tag, 0) + 1
    k.vm = vm_cnt
    loadq = []
    for kb in range(18):
        loadq += x_ops(kb)
    loadq += dma_ops(2) + st_ops(0)
    for _ in range(16):
        loadq.pop(0)()

    def issue_all(tag, n):
        while cnt.get(tag, 0) < n:
            loadq.pop(0)()

    def epi_ops(t):
        st = t % 3
        ops = [("lg", f"ds_read_b128 {r(CV,4)}, v15 offset:{t*128}", ("cv", t)),
               ("lg", f"ds_read_b128 {r(CV+4,4)}, v15 offset:{t*128+64}", ("cv", t)),
               ("nop",), ("nop",), ("nop",), ("nop",),
               ("wait", ("cv", t))]
        for tt in range(2):
            g, u = ac(st, tt, 0), ac(st, tt, 1)
            T = TM + 4 * tt
            for i in range(4):
                ops.append(("e", f"v_fmac_f32 v{g+i}, v{NM+tt}, v{CV+i}"))
            for i in range(4):
                ops.append(("e", f"v_mul_f32 v{T+i}, v{10+tt}, v{g+i}"))
                ops.append(("e", f"v_fmac_f32 v{u+i}, v{NM+tt}, v{CV+4+i}"))
            for i in range(4):
                ops.append(("e", f"v_exp_f32 v{T+i}, v{T+i}"))
                ops.append(("e", f"v_mul_f32 v{g+i}, v{g+i}, v{u+i}"))
            for i in range(4):
                ops.append(("e", f"v_fma_f32 v{T+i}, v{T+i}, v{12+tt}, v{12+tt}"))
            for i in range(4):
                ops.append(("e", f"v_rcp_f32 v{T+i}, v{T+i}"))
            ops.append(("nop",))
            for i in range(4):
                ops.append(("e", f"v_mul_f32 v{g+i}, v{g+i}, v{T+i}"))
            h = HP + 4 * tt + 2 * (t & 1) if t < 8 else HP + 2 * tt
            ops.append(("e", f"v_cvt_pk_bf16_f32 v{h}, v{g}, v{g+1}"))
            ops.append(("e", f"v_cvt_pk_bf16_f32 v{h+1}, v{g+2}, v{g+3}"))
            if t == 8:
                if tt == 1:
                    ops.append(("e", f"v_permlane16_swap_b32 v{HP}, v{HP+2}"))
                    ops.append(("e", f"v_permlane16_swap_b32 v{HP+1}, v{HP+3}"))
                    ops.append(("vm", f"buffer_store_dwordx4 {r(HP,4)}, v3, {SA}, s30 offen {SC}"))
            elif t & 1:
                ops.append(("vm", f"buffer_store_dwordx4 {r(h-2,4)}, v1, {SA}, s{33+tt} offen offset:{1024*(t>>1)} {SC}"))
        return ops

    def run_op(o):
        if o[0] == "e":
            k.e(o[1])
        elif o[0] == "lg":
            k.lg(o[1], tag=o[2])
        elif o[0] == "vm":
            k.vm(o[1])
        elif o[0] == "wait":
            k.wait(lg=o[1])

    seq = [(t, kb, mt) for kb in range(18) for t in range(2) for mt in range(2)]
    seq += [(t, kb, mt) for t in range(2, 9) for kb in range(18) for mt in range(2)]
    NF = len(seq)

    def rd(F):
        t, kb, mt = seq[F]
        if F == 0:
            k.wait(vm="cs")
            for i in range(1, 18):
                k.e(f"v_add_f32 v{CSP}, v{CSP}, v{cs_regs[i]}")
            k.lg(f"ds_write_b32 v14, v{CSP}")
            k.e("s_barrier")
            k.stamp()
        elif F >= 72 and kb == 0 and mt == 0:
            issue_all(("dma", t), 5)
            k.wait(vm=("dma", t))
            k.e("s_barrier")
            if t in (2, 6):
                k.stamp()
            if t == 3:
                loadq.extend(dma_ops(4) + dma_ops(5))
            elif 4 <= t <= 6:
                loadq.extend(dma_ops(t + 2))
            elif t >= 7:
                loadq.extend(gb_dma_ops(k, t - 7, 18, 41, 1, "f2"))
        k.lg(f"ds_read_b128 {r(WF+4*(F%NB),4)}, v{4+(t&3)} offset:{(kb*2+mt)*1024}", tag=("w", F))

    for F in range(PDW):
        rd(F)
    fill = []
    LE = len(epi_ops(0))
    rate = 1.30 * LE / 72.0
    credit = 0.0
    for F in range(NF):
        t, kb, mt = seq[F]
        if F + PDW < NF:
            rd(F + PDW)
        if F < 72 and F % 4 == 0:
            issue_all(("x", kb), 2)
        k.wait(vm=("x", kb) if F < 72 else None, lg=("w", F))
        if F == 72:
            issue_all("st", 5)
            k.wait(vm="st")
            for j in range(4):
                k.e(f"v_add_f32 v{CV+j}, v{CV+4+j}, v{CV+8+j}")
            for i in range(2, 5):
                for j in range(4):
                    k.e(f"v_add_f32 v{CV+j}, v{CV+j}, v{CV+4+4*i+j}")
            for o in st_ops(1):
                o()
            loadq.extend(dma_ops(3))
        if F == 84:
            k.wait(vm="st")
            for i in range(4):
                for j in range(4):
                    k.e(f"v_add_f32 v{CV+j}, v{CV+j}, v{CV+4+4*i+j}")
            for tt in range(2):
                reduce_g(k, CV + 2 * tt, CV + 4)
                mean_rstd(k, CV + 2 * tt, NM + tt, 10 + tt, 12 + tt)
                k.e(f"""
                v_sub_f32 v{NM+tt}, 0, v{NM+tt}
                v_mul_f32 v{10+tt}, {hexf(-1.4426950408889634)}, v{10+tt}
                """)
        if F == 84:
            fill += [(0, o) for o in epi_ops(0)] + [(1, o) for o in epi_ops(1)]
        if F > 72 and kb == 0 and mt == 0:
            while fill and fill[0][0] <= t - 3:
                run_op(fill.pop(0)[1])
            fill += [(t - 1, ("nop",))] * 3 + [(t - 1, o) for o in epi_ops(t - 1)]
        for tt in range(2):
            a = r(ac(t % 3, tt, mt), 4)
            c = "0" if kb == 0 else a
            k.e(f"v_mfma_f32_16x16x32_bf16 {a}, {r(WF+4*(F%NB),4)}, {xf(tt,kb)}, {c}")
            if F >= 84:
                credit += rate * (1.25 if F < 108 else 1.0)
                while credit >= 1.0 and fill:
                    run_op(fill.pop(0)[1])
                    credit -= 1.0
                if not fill:
                    credit = 0.0
        if loadq and (F < 72 or F % 2 == 0):
            loadq.pop(0)()
    assert not loadq
    k.stamp()
    fill += [(8, o) for o in epi_ops(8)]
    while fill:
        run_op(fill.pop(0)[1])
    k.vm = _vm
    k.publish(40, slot=3)


def phase_ffn2(k, Lloop):
    k.stamp()
    gb_setup(k)
    k.e(f"""
    s_and_b32 s30, s2, 3
    s_bfe_u32 s31, s2, 0x10002
    s_lshl_b32 s31, s31, 3
    s_bfe_u32 s32, s2, 0x30003
    s_add_u32 s31, s31, s32
    s_lshr_b32 s32, s2, 6
    s_lshl_b32 s33, s32, 2
    s_add_u32 s33, s33, s30
    s_mul_i32 s33, s33, {18*18432}
    s_add_u32 s33, s33, {W2P}
    s_lshl_b32 s34, s31, 3
    s_lshl_b32 s35, s17, 1
    s_add_u32 s34, s34, s35
    s_add_u32 s36, s34, s18
    s_xor_b32 s35, s18, 1
    s_add_u32 s37, s34, s35
    s_mul_i32 s35, s30, 36
    s_mul_i32 s38, s18, 18
    s_add_u32 s35, s35, s38
    s_mul_i32 s38, s36, 144
    s_add_u32 s38, s38, s35
    s_lshl_b32 s38, s38, 10
    s_add_u32 s38, s38, {HB}
    s_mul_i32 s39, s37, 144
    s_add_u32 s39, s39, s35
    s_lshl_b32 s39, s39, 10
    s_add_u32 s39, s39, {HB}
    s_lshr_b32 s27, s31, 1
    s_lshl_b32 s27, s27, 2
    s_add_u32 s27, s27, s30
    s_lshl_b32 s27, s27, 8
    s_add_u32 s27, s27, {CNT + C_F1*256}
    s_lshl_b32 s28, s31, 2
    s_add_u32 s28, s28, s32
    s_lshl_b32 s28, s28, 8
    s_add_u32 s28, s28, {CNT + C_F2*256}
    s_lshl_b32 s29, s31, 8
    s_add_u32 s29, s29, {LSTR + CNT + C_RED*256}
    s_lshl_b32 s46, s32, 2
    s_bfe_u32 s47, s2, 0x20001
    s_add_u32 s46, s46, s47
    s_mul_i32 s46, s46, {9*18432}
    s_add_u32 s46, s46, {WQKVP}
    s_cmp_eq_u32 s{LAY}, 0
    s_cselect_b32 s46, s46, {OOB - 0x100000}
    """)
    NPRE = 4

    def pre():
        for G in range(2, NPRE):
            for o in gb_dma_ops(k, G, 18, 33, 1):
                o()
    k.await_(27, 1, 8, pre)
    for G in range(2):
        for o in gb_act_ops(k, G, 18, 38, 39):
            o()
    extra = {7: gb_dma_ops(k, 0, 9, 46, 2, "q"), 8: gb_dma_ops(k, 1, 9, 46, 2, "q")}
    gb_main(k, 18, 33, 38, 39, False, NPRE, 1, extra)
    gb_exchange(k)
    XR = ACT
    PB = ACT + 20
    k.e(f"""
    s_lshl_b32 s40, s36, 2
    s_add_u32 s40, s40, s32
    s_mul_i32 s41, s40, 4608
    s_mul_i32 s40, s40, 5120
    s_add_u32 s40, s40, {PART}
    s_mul_i32 s42, s30, {128*4*5120}
    s_add_u32 s42, s42, s40
    s_add_u32 s43, s42, 4096
    v_lshlrev_b32 v10, 10, v3
    v_lshl_add_u32 v10, v2, 4, v10
    v_lshrrev_b32 v11, 1, v3
    v_lshlrev_b32 v11, 8, v11
    v_lshl_add_u32 v11, v2, 4, v11
    v_and_b32 v12, 1, v3
    v_lshl_add_u32 v11, v12, 3, v11
    v_add_u32 v11, 4096, v11
    v_lshlrev_b32 v12, 3, v0
    """)
    for nt in range(9):
        gb_xadd(k, nt)
    Lown, Lj, Lskip, Lfin, Lend = (k.lab(x) for x in ("own", "fj", "fskip", "ffin", "fend"))
    k.e(f"""
    s_cmp_eq_u32 s17, s30
    s_cbranch_scc1 {Lown}
    """)
    for i in range(4):
        d = WFR + 4 * i
        for c in range(4):
            k.e(f"v_cvt_pk_bf16_f32 v{d+c}, v{ACC+8*c+i}, v{ACC+8*c+4+i}")
        k.e(f"buffer_store_dwordx4 {r(d,4)}, v1, {SA}, s42 offen offset:{1024*i} {SC}")
    k.e(f"""
    v_cvt_pk_bf16_f32 v{WFR+16}, v{ACC+32}, v{ACC+33}
    v_cvt_pk_bf16_f32 v{WFR+17}, v{ACC+34}, v{ACC+35}
    buffer_store_dwordx2 {r(WFR+16,2)}, v12, {SA}, s43 offen {SC}
    s_branch {Lj}
    """)
    k.label(Lown)
    k.e(f"s_add_u32 s44, s41, {XB}")
    for i in range(4):
        k.e(f"buffer_load_dwordx4 {r(XR+4*i,4)}, v10, {SA}, s44 offen offset:{256*i} {SC}")
    k.e(f"buffer_load_dwordx2 {r(XR+16,2)}, v11, {SA}, s44 offen {SC}")
    k.label(Lj)
    k.publish(28)
    k.await_(28, 1, 4)
    k.e(f"""
    s_cmp_lg_u32 s17, s30
    s_cbranch_scc1 {Lskip}
    """)
    for p in range(3):
        k.e(f"""
        s_add_u32 s44, s30, {p+1}
        s_and_b32 s44, s44, 3
        s_mul_i32 s44, s44, {128*4*5120}
        s_add_u32 s44, s44, s40
        s_add_u32 s45, s44, 4096
        """)
        for i in range(4):
            k.vm(f"buffer_load_dwordx4 {r(PB+18*p+4*i,4)}, v1, {SA}, s44 offen offset:{1024*i} {SC}", tag=("pp", p))
        k.vm(f"buffer_load_dwordx2 {r(PB+18*p+16,2)}, v12, {SA}, s45 offen {SC}", tag=("pp", p))
    T = WFR + 18
    for p in range(3):
        k.wait(vm=("pp", p))
        for i in range(4):
            for c in range(4):
                s = PB + 18 * p + 4 * i + c
                k.e(f"""
                v_lshlrev_b32 v{T}, 16, v{s}
                v_and_b32 v{s}, 0xffff0000, v{s}
                v_add_f32 v{ACC+8*c+i}, v{ACC+8*c+i}, v{T}
                v_add_f32 v{ACC+8*c+4+i}, v{ACC+8*c+4+i}, v{s}
                """)
        for c in range(2):
            s = PB + 18 * p + 16 + c
            k.e(f"""
            v_lshlrev_b32 v{T}, 16, v{s}
            v_and_b32 v{s}, 0xffff0000, v{s}
            v_add_f32 v{ACC+32+2*c}, v{ACC+32+2*c}, v{T}
            v_add_f32 v{ACC+33+2*c}, v{ACC+33+2*c}, v{s}
            """)
    for i in range(4):
        for hh in range(2):
            a = [ACC + 4 * (4 * hh + c) + i for c in range(4)]
            resid_round(k, a, XR + 4 * i + 2 * hh, WFR + 4 * i + 2 * hh, T)
    resid_round(k, [ACC + 32 + c for c in range(4)], XR + 16, WFR + 16, T)
    k.e(f"""
    s_cmp_lg_u32 s{LAY}, 0
    s_cbranch_scc1 {Lfin}
    s_add_u32 s44, s41, {LSTR + XA}
    v_mov_b32 v14, 0x3f803f80
    v_mov_b32 v8, 0
    v_mov_b32 v9, 0
    """)
    for i in range(4):
        k.e(f"buffer_store_dwordx4 {r(WFR+4*i,4)}, v10, {SA}, s44 offen offset:{256*i} {SC}")
    k.e(f"buffer_store_dwordx2 {r(WFR+16,2)}, v11, {SA}, s44 offen {SC}")
    for d in range(18):
        k.e(f"v_dot2c_f32_bf16 v8, v{WFR+d}, v14")
        k.e(f"v_dot2c_f32_bf16 v9, v{WFR+d}, v{WFR+d}")
    k.e(f"""
    s_lshl_b32 s44, s36, 9
    s_lshl_b32 s45, s32, 7
    s_add_u32 s44, s44, s45
    s_add_u32 s44, s44, {LSTR + STA}
    """)
    reduce_g(k, 8, 10)
    k.e(f"""
    s_mov_b64 exec, 0xffff
    buffer_store_dwordx2 v[8:9], v12, {SA}, s44 offen {SC}
    s_mov_b64 exec, -1
    """)
    k.label(Lskip)
    k.vmq, k.lgq = [], []
    k.e(f"""
    s_cmp_lg_u32 s{LAY}, 0
    s_cbranch_scc1 {Lend}
    """)
    nst0 = getattr(k, "nst", 0)
    k.publish(29, slot=4)
    k.e(f"""
    s_mov_b32 s{LAY}, 1
    s_add_u32 s12, s12, {LSTR}
    s_addc_u32 s13, s13, 0
    s_mov_b32 s14, {LSTR}
    s_branch {Lloop}
    """)
    k.label(Lfin)
    k.e(f"""
    s_mov_b32 s44, s6
    s_mov_b32 s45, s7
    s_mov_b32 s46, {2048*576*2}
    s_mov_b32 s47, 0x20000
    s_mul_i32 s40, s36, {16*1152}
    s_mul_i32 s41, s32, 288
    s_add_u32 s40, s40, s41
    v_mul_u32_u24 v10, 1152, v2
    v_lshl_add_u32 v11, v3, 3, v10
    v_lshl_add_u32 v10, v3, 6, v10
    """)
    for i in range(4):
        k.e(f"buffer_store_dwordx4 {r(WFR+4*i,4)}, v10, s[44:47], s40 offen offset:{16*i}")
    k.e(f"buffer_store_dwordx2 {r(WFR+16,2)}, v11, s[44:47], s40 offen offset:256")
    k.label(Lend)
    if Kern.STAMPS:
        k.nst = nst0
        k.stamp()
        k.wait_all()
        k.stamp()
        k.dump(4)


def gen_mega(name="mega_kernel"):
    k = Mega(name, vgpr=256, sgpr=102 if Kern.STAMPS else 80)
    Kern.STAMP_S = 80
    Lexit, Lloop = k.lab("exit"), k.lab("loop")
    k.e(f"""
    s_cmp_ge_u32 s2, 256
    s_cbranch_scc1 {Lexit}
    s_load_dwordx2 s[4:5], s[0:1], 72
    s_load_dwordx2 s[6:7], s[0:1], 56
    s_load_dwordx4 s[{PS+20}:{PS+23}], s[0:1], 24
    s_load_dwordx4 s[{PS+24}:{PS+27}], s[0:1], 40
    v_lshrrev_b32 v1, 6, v0
    s_mov_b32 s{LAY}, 0
    v_readfirstlane_b32 s16, v1
    s_waitcnt lgkmcnt(0)
    s_mov_b32 s8, s4
    s_mov_b32 s9, s5
    s_mov_b32 s10, {WS_USED + (0x400000 if Kern.STAMPS else 0)}
    s_mov_b32 s11, 0x20000
    s_add_u32 s12, s4, {ABASE}
    s_addc_u32 s13, s5, 0
    s_mov_b32 s14, {2*LSTR}
    s_mov_b32 s15, 0x20000
    """)
    gb_setup(k)
    k.e(f"""
    s_lshr_b32 s46, s2, 6
    s_lshl_b32 s46, s46, 2
    s_bfe_u32 s47, s2, 0x20001
    s_add_u32 s46, s46, s47
    s_mul_i32 s46, s46, {9*18432}
    s_add_u32 s46, s46, {WQKVP}
    """)
    for G in range(2):
        for o in gb_dma_ops(k, G, 9, 46, 2):
            o()
    k.label(Lloop)
    phase_qkv(k)
    k.nst = 0
    phase_attn(k)
    phase_wo(k)
    phase_ffn1(k)
    phase_ffn2(k, Lloop)
    k.label(Lexit)
    k.e("s_endpgm")
    return k
```

```python
import sys, os
from asmlib import *
from layout import *
if os.environ.get("STAMPS"): Kern.STAMPS = True
if os.environ.get("STAMPS") == "2": Kern.STAMP_INS = "s_memtime"
import k_prep, mega

HEAD = open("interleave_layers__softmax_full_mha__glu_gated_swiglu__prompt.s.ref").read().split("; Override")[0]

def build():
    kerns = [(mega.gen_mega(), 256, 512, mega.LDS_BYTES)]
    s = HEAD
    for kk, g, b, l in kerns:
        s += f"; @launch kernel={kk.name} grid=({g},1,1) block=({b},1,1) lds={l}\n"
    s += '.amdgcn_target "amdgcn-amd-amdhsa--gfx950"\n.text\n'
    desc = ""
    for kk, g, b, l in kerns:
        body = kk.text()
        s += f".globl {kk.name}\n.p2align 8\n.type {kk.name},@function\n{kk.name}:\n{body}"
        desc += ".p2align 6\n" + descriptor(kk.name, kk.vgpr, kk.sgpr, kk.accum)
        print(f"{kk.name}: {len(kk.ins)} instrs, pad {kk.npad}, regs {kk.check_regs()}", file=sys.stderr)
    s += '.section .rodata,"a"\n' + desc
    return s

if __name__ == "__main__":
    out = sys.argv[1] if len(sys.argv) > 1 else "interleave_layers__softmax_full_mha__glu_gated_swiglu__prompt.s"
    open(out, "w").write(build())
```

```python
from asmlib import *
from layout import *

N_W13 = 648
N_W2 = 576
N_W2T = 72
N_QKV = 252
N_WO = 90
N_X = 128
T_QKV = 0
T_X = T_QKV + N_QKV
T_WO = T_X + N_X
T_W2T = T_WO + N_WO
T_Z = T_W2T + N_W2T
T_END = T_Z + 16
PREP_WGS = (T_END + 3) // 4
A_W1 = 0
A_W3 = N_W13
A_W2 = 2 * N_W13
A_END = A_W2 + N_W2


def ws_srd(k, sptr=4, srd=8):
    k.e(f"""
    s_mov_b32 s{srd}, s{sptr}
    s_mov_b32 s{srd+1}, s{sptr+1}
    s_mov_b32 s{srd+2}, {WS_USED}
    s_mov_b32 s{srd+3}, 0x20000
    """)


def sdiv(k, q, r, x, d, tmp):
    magic = (2 ** 32 + d - 1) // d
    k.e(f"""
    s_mul_hi_u32 s{q}, s{x}, {magic}
    s_mul_i32 s{tmp}, s{q}, {d}
    s_sub_u32 s{r}, s{x}, s{tmp}
    """)


CGS = 4 * 18 * 2 * 9 * 1024


def w2_rows(k, skb, SO, T, vsrc, vg, vt):
    sdiv(k, T + 3, T + 4, skb, 9, T + 5)
    k.e(f"""
    s_lshr_b32 s{T+5}, s{T+4}, 2
    s_mul_i32 s{T+5}, s{T+5}, 9
    s_and_b32 s{T}, s{T+4}, 3
    s_lshl_b32 s{T}, s{T}, 1
    s_add_u32 s{T+5}, s{T+5}, s{T}
    s_add_u32 s{T}, s{T+5}, 1
    s_cmp_eq_u32 s{T+4}, 8
    s_cselect_b32 s{T+5}, 8, s{T+5}
    s_cselect_b32 s{T}, 17, s{T}
    s_mul_i32 s{T+3}, s{T+3}, 18
    s_add_u32 s{T+5}, s{T+5}, s{T+3}
    s_add_u32 s{T}, s{T}, s{T+3}
    """)
    for e, tau in ((0, T + 5), (1, T)):
        k.e(f"""
        s_lshr_b32 s{T+3}, s{tau}, 3
        s_lshl_b32 s{T+3}, s{T+3}, 7
        s_and_b32 s{SO+1}, s{tau}, 7
        s_add_u32 s{T+3}, s{T+3}, s{SO+1}
        s_mul_i32 s{SO+4*e}, s{T+3}, 1152
        """)
    k.e(f"""
    s_sub_u32 s{T+5}, s{SO+4}, s{SO}
    s_add_u32 s{T+3}, s{SO}, {32*1152}
    s_cmp_eq_u32 s{T+4}, 8
    s_cselect_b32 s{T+5}, s{T+5}, {64*1152}
    s_cselect_b32 s{SO+4}, s{T+3}, s{SO+4}
    s_cselect_b32 s{T}, 2, 1
    s_mul_i32 s{T}, s{T}, {32*1152}
    v_lshrrev_b32 v{vt}, 1, v{vg}
    v_mul_lo_u32 v{vsrc}, v{vt}, s{T+5}
    v_and_b32 v{vt}, 1, v{vg}
    v_mul_lo_u32 v{vt}, v{vt}, s{T}
    v_add_u32 v{vsrc}, v{vsrc}, v{vt}
    """)
    for e in range(2):
        for j in range(1, 4):
            k.e(f"s_add_u32 s{SO+4*e+j}, s{SO+4*e}, {8*j*1152}")
    sdiv(k, T + 3, T + 4, skb, 36, T + 5)
    k.e(f"""
    s_mul_i32 s{T+3}, s{T+3}, 36
    s_cmp_ge_u32 s{T+4}, 18
    s_cselect_b32 s{T+5}, 35, 0
    s_lshl_b32 s{T+4}, s{T+4}, 1
    s_sub_u32 s{T+4}, s{T+4}, s{T+5}
    s_add_u32 s{T+3}, s{T+3}, s{T+4}
    s_mul_i32 s{T+3}, s{T+3}, 9216
    """)


def ffn_task_setup(k, P, sT, S, V, vlane):
    T = S + 16
    o, g, t0, t1 = V + 4, V + 5, V + 6, V + 7
    k.e(f"""
    v_and_b32 v{o}, 15, v{vlane}
    v_lshrrev_b32 v{g}, 4, v{vlane}
    s_mov_b32 s{S+2}, {4608*576*2}
    s_mov_b32 s{S+3}, 0x20000
    s_cmp_lt_u32 s{sT}, {A_W2}
    s_cbranch_scc1 {P}w13
    s_sub_u32 s{T}, s{sT}, {A_W2}
    s_min_u32 s{T}, s{T}, {N_W2-1}
    s_mov_b32 s{S}, s{S+26}
    s_mov_b32 s{S+1}, s{S+27}
    s_lshr_b32 s{T+1}, s{T}, 2
    s_and_b32 s{T+2}, s{T}, 3
    """)
    w2_rows(k, T + 1, S + 4, T, V, g, t0)
    k.e(f"""
    s_add_u32 s{T+3}, s{T+3}, {W2P}
    v_mov_b32 v{V+3}, {OOB}
    s_mul_i32 s{T+4}, s{T+2}, 288
    v_lshl_add_u32 v{V}, v{o}, 4, v{V}
    v_add_u32 v{V}, s{T+4}, v{V}
    s_mul_i32 s{T+4}, s{T+2}, {CGS}
    s_add_u32 s{T+3}, s{T+3}, s{T+4}
    s_cmp_lt_u32 s{sT}, {A_END}
    s_cselect_b32 s{T+3}, s{T+3}, {OOB - 8192}
    v_lshl_add_u32 v{V+1}, v{vlane}, 4, s{T+3}
    v_add_u32 v{V+2}, 4096, v{V+1}
    """)
    for c in range(4):
        k.e(f"s_mov_b32 s{S+12+c}, {1024*c}")
    k.e(f"s_branch {P}done")
    k.label(P + "w13")
    k.e(f"""
    s_cmp_lt_u32 s{sT}, {A_W3}
    s_cselect_b32 s{S}, s{S+22}, s{S+24}
    s_cselect_b32 s{S+1}, s{S+23}, s{S+25}
    s_cselect_b32 s{T+5}, 0, 1
    s_cselect_b32 s{T}, 0, {N_W13}
    s_sub_u32 s{T}, s{sT}, s{T}
    """)
    sdiv(k, T + 1, T + 2, T, 36, T + 3)
    for j in range(8):
        k.e(f"s_mov_b32 s{S+4+j}, {j*9216}")
    for c in range(4):
        k.e(f"s_mov_b32 s{S+12+c}, {36864*c}")
    k.e(f"""
    s_lshl_b32 s{T+3}, s{T+1}, 5
    v_lshl_add_u32 v{V}, v{g}, 3, s{T+3}
    v_mul_u32_u24 v{V}, 9216, v{V}
    s_lshl_b32 s{T+3}, s{T+2}, 8
    v_lshl_add_u32 v{t0}, v{o}, 4, s{T+3}
    v_add_u32 v{V}, v{V}, v{t0}
    s_mul_i32 s{T+3}, s{T+2}, {8*18}
    s_add_u32 s{T+3}, s{T+3}, s{T+1}
    s_lshl_b32 s{T+3}, s{T+3}, 1
    s_add_u32 s{T+3}, s{T+3}, s{T+5}
    s_lshl_b32 s{T+3}, s{T+3}, 10
    s_add_u32 s{T+3}, s{T+3}, {W13P}
    v_lshl_add_u32 v{V+1}, v{vlane}, 4, s{T+3}
    v_add_u32 v{V+2}, {4*36864}, v{V+1}
    s_mul_i32 s{T+3}, s{T+1}, 288
    s_lshl_b32 s{T+4}, s{T+2}, 3
    s_add_u32 s{T+3}, s{T+3}, s{T+4}
    s_lshl_b32 s{T+3}, s{T+3}, 1
    s_add_u32 s{T+3}, s{T+3}, s{T+5}
    s_lshl_b32 s{T+3}, s{T+3}, 6
    s_add_u32 s{T+3}, s{T+3}, {CS13}
    v_lshl_add_u32 v{V+3}, v{o}, 2, s{T+3}
    v_mov_b32 v{t0}, {OOB}
    v_cmp_gt_u32 vcc, 16, v{vlane}
    s_nop 1
    v_cndmask_b32 v{V+3}, v{t0}, v{V+3}, vcc
    """)
    k.label(P + "done")


def gen_prep():
    k = Kern("prep_kernel", vgpr=128, sgpr=64)
    P = "Lp_"
    k.e(f"""
    s_load_dwordx8 s[40:47], s[0:1], 0
    s_load_dwordx2 s[48:49], s[0:1], 48
    s_load_dwordx2 s[4:5], s[0:1], 72
    v_lshrrev_b32 v1, 6, v0
    v_and_b32 v0, 63, v0
    v_readfirstlane_b32 s16, v1
    s_lshl_b32 s17, s2, 2
    s_add_u32 s16, s16, s17
    v_and_b32 v2, 15, v0
    v_lshrrev_b32 v3, 4, v0
    v_lshlrev_b32 v4, 4, v0
    v_mov_b32 v28, 0x3f803f80
    v_mov_b32 v29, 0x3f803f80
    v_mov_b32 v30, 0x3f803f80
    v_mov_b32 v31, 0x3f803f80
    s_mov_b32 s36, 0x05040100
    s_mov_b32 s37, 0x07060302
    s_mov_b32 s15, 0x20000
    s_waitcnt lgkmcnt(0)
    """)
    ws_srd(k)

    def loads():
        for j in range(8):
            k.e(f"buffer_load_dwordx4 v[{32+4*j}:{35+4*j}], v10, s[12:15], s{20+j} offen")

    k.e(f"""
    s_cmp_ge_u32 s16, {T_END}
    s_cbranch_scc1 {P}end
    s_cmp_lt_u32 s16, {T_X}
    s_cbranch_scc1 {P}qkv
    s_cmp_lt_u32 s16, {T_WO}
    s_cbranch_scc1 {P}x
    s_cmp_ge_u32 s16, {T_Z}
    s_cbranch_scc1 {P}z
    s_cmp_lt_u32 s16, {T_W2T}
    s_cbranch_scc1 {P}wo
    """)
    k.e(f"""
    s_sub_u32 s17, s16, {T_W2T}
    s_mov_b32 s12, s48
    s_mov_b32 s13, s49
    s_mov_b32 s14, {4608*576*2}
    """)
    w2_rows(k, 17, 20, 28, 10, 3, 5)
    k.e(f"""
    v_bfe_u32 v5, v2, 1, 2
    v_mul_u32_u24 v6, 288, v5
    v_add_u32 v10, v10, v6
    v_mul_u32_u24 v12, {CGS}, v5
    v_and_b32 v5, 1, v2
    v_lshl_add_u32 v10, v5, 4, v10
    v_add_u32 v10, 256, v10
    v_lshl_add_u32 v12, v5, 7, v12
    v_lshl_add_u32 v12, v3, 8, v12
    v_lshrrev_b32 v5, 3, v2
    v_mul_u32_u24 v6, {2304*1152}, v5
    v_add_u32 v10, v10, v6
    """)
    loads()
    k.e(f"""
    v_mul_u32_u24 v6, {2*18*2*9216}, v5
    v_add_u32 v12, v12, v6
    s_add_u32 s31, s31, {W2P + 8192}
    v_add_u32 v12, s31, v12
    v_mov_b32 v9, {OOB}
    s_branch {P}dst16
    """)
    k.label(P + "wo")
    k.e(f"s_sub_u32 s16, s16, {T_WO}")
    sdiv(k, 17, 18, 16, 5, 19)
    k.e(f"""
    s_mov_b32 s12, s44
    s_mov_b32 s13, s45
    s_mov_b32 s14, {576*576*2}
    s_lshl_b32 s30, s18, 3
    v_lshrrev_b32 v5, 1, v2
    v_add_u32 v5, s30, v5
    v_and_b32 v6, 1, v2
    v_lshlrev_b32 v6, 7, v6
    v_lshl_add_u32 v6, v3, 8, v6
    s_lshl_b32 s30, s18, 8
    v_lshlrev_b32 v7, 4, v2
    v_add_u32 v7, s30, v7
    s_cmp_ge_u32 s17, 16
    s_cbranch_scc1 {P}wo_tail
    """)
    for j in range(8):
        k.e(f"s_mov_b32 s{20+j}, {j*1152}")
    k.e(f"""
    s_mul_i32 s30, s17, 36
    v_lshrrev_b32 v10, 1, v3
    v_mul_u32_u24 v10, 18, v10
    v_and_b32 v9, 1, v3
    v_lshl_add_u32 v10, v9, 3, v10
    v_add_u32 v10, s30, v10
    s_branch {P}wo_join
    """)
    k.label(P + "wo_tail")
    for j in range(8):
        k.e(f"s_mov_b32 s{20+j}, {(18*(j>>1) + (j&1))*1152}")
    k.e(f"""
    s_sub_u32 s30, s17, 16
    s_mul_i32 s30, s30, 288
    s_add_u32 s30, s30, 16
    v_mul_u32_u24 v10, 72, v3
    v_add_u32 v10, s30, v10
    """)
    k.label(P + "wo_join")
    k.e(f"""
    v_mul_u32_u24 v10, 1152, v10
    v_add_u32 v10, v10, v7
    """)
    loads()
    k.e(f"""
    v_mul_u32_u24 v8, 18, v5
    v_add_u32 v8, s17, v8
    v_lshl_add_u32 v8, v8, 10, v6
    v_add_u32 v8, {WOP}, v8
    v_cmp_gt_u32 vcc, 36, v5
    v_mov_b32 v9, {OOB}
    v_cndmask_b32 v12, v9, v8, vcc
    """)
    k.label(P + "dst16")
    for c in range(1, 8):
        k.e(f"v_add_u32 v{12+c}, {16*c}, v12")
    for c in range(8):
        k.e(f"v_mov_b32 v{20+c}, v9")
    k.e(f"s_branch {P}core")

    k.label(P + "qkv")
    sdiv(k, 17, 18, 16, 14, 19)
    k.e(f"""
    s_mov_b32 s12, s42
    s_mov_b32 s13, s43
    s_mov_b32 s14, {576*1728*2}
    """)
    for j in range(8):
        k.e(f"s_mov_b32 s{20+j}, {j*3456}")
    k.e(f"""
    s_lshl_b32 s30, s17, 5
    v_lshl_add_u32 v10, v3, 3, s30
    v_mul_u32_u24 v10, 3456, v10
    s_lshl_b32 s30, s18, 8
    v_lshl_add_u32 v9, v2, 4, s30
    v_add_u32 v10, v10, v9
    """)
    loads()
    sdiv(k, 32, 33, 17, 9, 19)
    k.e(f"""
    s_lshl_b32 s30, s33, 1
    s_add_u32 s30, s30, s32
    s_mul_i32 s30, s30, 9216
    s_add_u32 s30, s30, {WQKVP}
    v_lshl_add_u32 v11, v3, 8, s30
    s_mul_i32 s31, s17, {12*144*4}
    s_add_u32 s31, s31, {CSQ}
    s_lshl_b32 s35, s18, 7
    v_lshl_add_u32 v5, v2, 3, s35
    v_mov_b32 v72, {OOB}
    v_cmp_gt_u32 s[56:57], 16, v0
    """)
    for c in range(8):
        k.e(f"""
        v_add_u32 v6, {c}, v5
        v_mul_u32_u24 v7, 3641, v6
        v_lshrrev_b32 v7, 16, v7
        v_mul_u32_u24 v8, 18, v7
        v_sub_u32 v8, v6, v8
        v_and_b32 v9, 7, v7
        v_lshrrev_b32 v7, 3, v7
        v_lshrrev_b32 v64, 3, v8
        v_lshlrev_b32 v64, 2, v64
        v_and_or_b32 v64, v8, 3, v64
        v_bfe_u32 v65, v8, 2, 1
        v_and_b32 v66, 6, v9
        v_add_u32 v66, v66, v65
        v_lshlrev_b32 v66, 4, v66
        v_and_b32 v67, 1, v9
        v_lshl_add_u32 v66, v67, 3, v66
        v_lshlrev_b32 v67, 4, v9
        v_lshl_add_u32 v67, v65, 3, v67
        v_cmp_gt_u32 vcc, 8, v7
        v_lshl_add_u32 v68, v9, 1, v8
        v_add_u32 v68, 112, v68
        v_cndmask_b32 v66, v67, v66, vcc
        v_add_u32 v66, v66, v64
        v_cmp_gt_u32 vcc, 16, v8
        v_mul_u32_u24 v69, {9*2*9}, v7
        v_mul_u32_u24 v70, 144, v7
        v_cndmask_b32 v66, v68, v66, vcc
        v_lshrrev_b32 v67, 4, v66
        v_add_u32 v69, v69, v67
        v_and_b32 v67, 15, v66
        v_lshlrev_b32 v67, 4, v67
        v_lshl_add_u32 v69, v69, 10, v67
        v_add_u32 v69, v69, v11
        v_cmp_gt_u32 vcc, 1728, v6
        v_add_u32 v70, v70, v66
        v_lshl_add_u32 v70, v70, 2, s31
        v_cndmask_b32 v{12+c}, v72, v69, vcc
        s_and_b64 vcc, vcc, s[56:57]
        s_nop 1
        v_cndmask_b32 v{20+c}, v72, v70, vcc
        """)

    k.label(P + "core")
    k.wait_all(lg=False)
    for c in range(8):
        for jp in range(4):
            k.e(f"v_perm_b32 v{64+4*c+jp}, v{32+4*(2*jp+1)+(c>>1)}, v{32+4*(2*jp)+(c>>1)}, s{36+(c&1)}")
        k.e(f"buffer_store_dwordx4 v[{64+4*c}:{67+4*c}], v{12+c}, s[8:11], 0 offen")
    for c in range(8):
        k.e(f"v_mfma_f32_16x16x32_bf16 v[{96+4*c}:{99+4*c}], v[28:31], v[{64+4*c}:{67+4*c}], 0")
    for c in range(8):
        k.e(f"buffer_store_dword v{96+4*c}, v{20+c}, s[8:11], 0 offen")
    k.e(f"s_endpgm")

    k.label(P + "x")
    k.e(f"""
    s_sub_u32 s16, s16, {T_X}
    s_mov_b32 s12, s40
    s_mov_b32 s13, s41
    s_mov_b32 s14, {2048*576*2}
    s_lshl_b32 s30, s16, 4
    v_add_u32 v5, s30, v2
    v_mul_u32_u24 v10, 1152, v5
    v_lshl_add_u32 v10, v3, 4, v10
    s_mul_i32 s30, s16, {18*1024}
    s_add_u32 s30, s30, {ABASE + XA}
    v_add_u32 v11, s30, v4
    v_mov_b32 v12, 0
    v_mov_b32 v13, 0
    s_lshl_b32 s31, s16, 9
    s_add_u32 s31, s31, {ABASE + STA}
    v_lshlrev_b32 v14, 3, v0
    """)
    for kb in range(18):
        k.vm(f"buffer_load_dwordx4 v[{32+4*kb}:{35+4*kb}], v10, s[12:15], 0 offen offset:{64*kb}", tag=("x", kb))
    for kb in range(18):
        k.wait(vm=("x", kb))
        if kb % 4 == 0 and kb:
            k.e(f"v_add_u32 v11, 4096, v11")
        k.vm(f"buffer_store_dwordx4 v[{32+4*kb}:{35+4*kb}], v11, s[8:11], 0 offen offset:{1024*(kb%4)}")
        for d in range(4):
            k.e(f"v_dot2c_f32_bf16 v12, v{32+4*kb+d}, v28")
            k.e(f"v_dot2c_f32_bf16 v13, v{32+4*kb+d}, v{32+4*kb+d}")
    k.e(f"""
    s_nop 2
    buffer_store_dwordx2 v[12:13], v14, s[8:11], s31 offen
    s_endpgm
    """)
    k.label(P + "z")
    k.e(f"""
    s_sub_u32 s16, s16, {T_Z}
    s_lshl_b32 s30, s16, 15
    s_add_u32 s30, s30, {ABASE + CNT}
    v_lshlrev_b32 v5, 7, v0
    v_mov_b32 v6, 0
    """)
    for i in range(4):
        k.e(f"buffer_store_dword v6, v5, s[8:11], s30 offen")
        k.e(f"s_add_u32 s30, s30, 8192")
    k.label(P + "end")
    k.e("s_endpgm")
    return k
```

```python
WQKVP = 0x0000000
WOP   = 0x0200000
W13P  = 0x0300000
W2P   = 0x0E00000
CSQ   = 0x1340000
CS13  = 0x1360000
W_END = 0x1420000
ABASE = 0x1500000
CNT   = 0x2A80000
XA    = 0x0010000
XB    = 0x0250000
STA   = 0x0490000
STB   = 0x04A0000
QF    = 0x0540000
KF    = 0x0740000
QL    = 0x0940000
KL    = 0x0980000
VF    = 0x09C0000
VT    = 0x0BC0000
OB    = 0x0C00000
HB    = 0x0E40000
OL    = 0x2A40000
PART  = 0x2040000
LSTR  = 0
CSTR  = 0x40000
ASIZE = 0x2B00000
WS_USED = ABASE + ASIZE
WS_SIZE = 268435456
OOB = 0x7FFFFF00
F_QKV = CNT + 0 * 32768
F_ATT = CNT + 1 * 32768
F_WO  = CNT + 2 * 32768
F_F1  = CNT + 3 * 32768
F_F2  = CNT + 4 * 32768
F_RED = CNT + 5 * 32768
```

```python
import os, struct
from asmlib import *
from layout import *
from k_prep import ws_srd, ffn_task_setup

SW = "s[8:11]"
SA = "s[12:15]"
LAY = 79
PS = 48
LDS_BYTES = 4 * 36864 + 2048
SC = "sc1"
SLEEP = int(os.environ.get("SLEEP", "8"))


def hexf(x):
    return "0x%08x" % struct.unpack("<I", struct.pack("<f", x))[0]


def r(b, n):
    return f"v[{b}:{b+n-1}]"


class Mega(Kern):
    uid = 0

    def lab(self, s):
        Mega.uid += 1
        return f"Lm{Mega.uid}_{s}"

    def lane_setup(self, half32=False):
        self.e(f"""
        v_mbcnt_lo_u32_b32 v0, -1, 0
        v_mbcnt_hi_u32_b32 v0, -1, v0
        v_lshlrev_b32 v1, 4, v0
        v_and_b32 v2, {31 if half32 else 15}, v0
        v_lshrrev_b32 v3, {5 if half32 else 4}, v0
        """)

    def dump(self, slot):
        if not Kern.STAMPS:
            return
        n = getattr(self, "nst", 0)
        self.e(f"""
        s_waitcnt lgkmcnt(0)
        s_lshl_b32 s100, s2, 3
        s_add_u32 s100, s100, s16
        s_lshl_b32 s100, s100, 6
        s_lshl_b32 s101, s{LAY}, 2
        s_add_u32 s100, s100, s101
        s_add_u32 s100, s100, {WS_USED + slot * 131072}
        s_mov_b64 exec, 1
        v_mov_b32 v13, 0
        """)
        for i in range(n):
            self.e(f"v_mov_b32 v14, s{Kern.STAMP_S + 2*i}")
            self.vm(f"buffer_store_dword v14, v13, {SW}, s100 offen offset:{4*i}")
        self.e("s_mov_b64 exec, -1")
        self.nst = 0

    def publish(self, ssig, slot=None):
        self.stamp()
        self.wait_all()
        self.stamp()
        L = self.lab("pub")
        self.e(f"""
        s_barrier
        s_cmp_lg_u32 s16, 0
        s_cbranch_scc1 {L}
        v_mov_b32 v13, s{LAY}
        v_mov_b32 v14, 1
        s_mov_b64 exec, 1
        buffer_store_dword v14, v13, {SA}, s{ssig} offen sc1
        s_mov_b64 exec, -1
        """)
        self.label(L)
        if slot is not None:
            self.dump(slot)

    def await_(self, swait, n, pre=None, skip_layer0=False, all_layer0=None):
        Lp, Lj, Ll, Ld = self.lab("p"), self.lab("j"), self.lab("l"), self.lab("d")
        q0 = list(self.vmq)
        self.e(f"""
        s_cmp_eq_u32 s16, 0
        s_cbranch_scc1 {Lp}
        """)
        if pre:
            pre()
        q1 = list(self.vmq)
        self.e(f"""
        s_barrier
        s_branch {Lj}
        """)
        self.label(Lp)
        if skip_layer0:
            self.e(f"""
            s_cmp_eq_u32 s{LAY}, 0
            s_cbranch_scc1 {Ld}
            """)
        mask = (1 << n) - 1
        self.e(f"""
        v_lshl_add_u32 v13, v0, 7, s{LAY}
        s_mov_b32 s3, 0x40000
        """)
        if all_layer0 is not None:
            La, Lb = self.lab("a"), self.lab("b")
            self.e(f"""
            s_cmp_lg_u32 s{LAY}, 0
            s_cbranch_scc1 {Lb}
            s_mov_b32 s{swait}, {all_layer0}
            """)
            self.label(La)
            self.e(f"""
            buffer_load_dword v14, v13, {SA}, s{swait} offen sc1
            v_add_u32 v15, 8192, v13
            buffer_load_dword v16, v15, {SA}, s{swait} offen sc1
            v_add_u32 v15, 16384, v13
            buffer_load_dword v17, v15, {SA}, s{swait} offen sc1
            v_add_u32 v15, 24576, v13
            buffer_load_dword v18, v15, {SA}, s{swait} offen sc1
            s_waitcnt vmcnt(0)
            v_and_b32 v14, v14, v16
            v_and_b32 v17, v17, v18
            v_and_b32 v14, v14, v17
            v_cmp_eq_u32 vcc, 0, v14
            s_sub_u32 s3, s3, 1
            s_cbranch_scc1 {Ld}
            s_nop 2
            s_cbranch_vccz {Ld}
            s_sleep {SLEEP}
            s_branch {La}
            """)
            self.label(Lb)
        self.e(f"""
        s_mov_b32 exec_lo, {mask & 0xffffffff}
        s_mov_b32 exec_hi, {mask >> 32}
        """)
        self.label(Ll)
        self.e(f"""
        buffer_load_dword v14, v13, {SA}, s{swait} offen sc1
        s_waitcnt vmcnt(0)
        v_cmp_eq_u32 vcc, 0, v14
        s_sub_u32 s3, s3, 1
        s_cbranch_scc1 {Ld}
        s_nop 2
        s_cbranch_vccz {Ld}
        s_sleep {SLEEP}
        s_branch {Ll}
        """)
        self.label(Ld)
        self.e(f"""
        s_mov_b64 exec, -1
        s_barrier
        """)
        self.vmq = q0
        if pre:
            pre()
        assert self.vmq == q1
        self.label(Lj)
        self.stamp()


def reduce_g(k, a, t):
    for sw in ("v_permlane32_swap_b32", "v_permlane16_swap_b32"):
        k.e(f"""
        v_mov_b32 v{t}, v{a}
        v_mov_b32 v{t+1}, v{a+1}
        {sw} v{a}, v{t}
        {sw} v{a+1}, v{t+1}
        v_add_f32 v{a}, v{a}, v{t}
        v_add_f32 v{a+1}, v{a+1}, v{t+1}
        """)


def mean_rstd(k, s, mean, rstd, t):
    k.e(f"""
    v_mul_f32 v{mean}, {hexf(1.0/576)}, v{s}
    v_mul_f32 v{t}, {hexf(1.0/576)}, v{s+1}
    v_fma_f32 v{t}, -v{mean}, v{mean}, v{t}
    v_max_f32 v{t}, 0, v{t}
    v_add_f32 v{t}, {hexf(1e-5)}, v{t}
    v_rsq_f32 v{rstd}, v{t}
    """)


def resid_round(k, a, x, d, t):
    k.e(f"""
    v_cvt_pk_bf16_f32 v{d}, v{a[0]}, v{a[1]}
    v_cvt_pk_bf16_f32 v{d+1}, v{a[2]}, v{a[3]}
    v_lshlrev_b32 v{t}, 16, v{x}
    v_and_b32 v{t+1}, 0xffff0000, v{x}
    v_lshlrev_b32 v{t+2}, 16, v{x+1}
    v_and_b32 v{t+3}, 0xffff0000, v{x+1}
    v_lshlrev_b32 v{a[0]}, 16, v{d}
    v_and_b32 v{a[1]}, 0xffff0000, v{d}
    v_lshlrev_b32 v{a[2]}, 16, v{d+1}
    v_and_b32 v{a[3]}, 0xffff0000, v{d+1}
    v_add_f32 v{a[0]}, v{a[0]}, v{t}
    v_add_f32 v{a[1]}, v{a[1]}, v{t+1}
    v_add_f32 v{a[2]}, v{a[2]}, v{t+2}
    v_add_f32 v{a[3]}, v{a[3]}, v{t+3}
    v_cvt_pk_bf16_f32 v{d}, v{a[0]}, v{a[1]}
    v_cvt_pk_bf16_f32 v{d+1}, v{a[2]}, v{a[3]}
    """)


GSZ = 36864
CSOFF = 4 * GSZ
PDW = 4
NB = 6
ACC = 16
WFR = ACC + 72
ACT = WFR + 4 * NB
TMP = ACT + 64


def acc(tt, nt):
    return r(ACC + (tt * 9 + nt) * 4, 4)


def wfr(f):
    return r(WFR + (f % NB) * 4, 4)


def act(s, tt):
    return r(ACT + ((((s >> 1) & 3) * 2 + (s & 1)) * 2 + tt) * 4, 4)


def gb_setup(k):
    k.lane_setup()
    k.e(f"""
    s_and_b32 s17, s16, 3
    s_lshr_b32 s18, s16, 2
    s_mul_i32 s19, s18, 9216
    v_add_u32 v4, s19, v1
    v_add_u32 v5, {GSZ}, v4
    v_add_u32 v6, {2*GSZ}, v4
    v_add_u32 v7, {3*GSZ}, v4
    s_mul_i32 s20, s16, 4608
    s_mul_i32 s21, s16, 2304
    s_mov_b32 s22, -1
    s_mov_b32 s23, 0
    s_mov_b32 s24, 0xffff
    s_mov_b32 s25, 0
    """)


def gb_dma_ops(k, G, nsteps, sW, rot, tg="dma"):
    full = (2 * G + 1 < nsteps)
    src, dst = G * GSZ, ((G + rot) & 3) * GSZ
    sw = 20 if full else 21
    n = 4 if full else 2

    def piece(i):
        if i == 0:
            k.e(f"""
            s_add_u32 m0, s{sw}, {dst}
            s_add_u32 s26, s{sW}, s{sw}
            s_add_u32 s26, s26, {src}
            """)
        k.vm(f"buffer_load_dwordx4 v1, {SW}, s26 offen offset:{1024*i} {SC} lds", tag=(tg, G))

    def last():
        k.e(f"""
        s_add_u32 m0, m0, {1024*n}
        s_add_u32 s26, s26, {1024*n}
        s_mov_b64 exec, s[{22 if full else 24}:{23 if full else 25}]
        """)
        k.vm(f"buffer_load_dwordx4 v1, {SW}, s26 offen {SC} lds", tag=(tg, G))
        k.e("s_mov_b64 exec, -1")
    return [lambda i=i: piece(i) for i in range(n)] + [last]


def gb_act_ops(k, G, nsteps, sA, sB):
    def a(s, tt):
        sr = sB if tt else sA
        if s % 4 == 0 and s:
            k.e(f"s_add_u32 s{sr}, s{sr}, 4096")
        k.vm(f"buffer_load_dwordx4 {act(s,tt)}, v1, {SA}, s{sr} offen offset:{1024*(s%4)} {SC}", tag=("act", s))
    return [lambda s=s, tt=tt: a(s, tt) for s in (2 * G, 2 * G + 1) if s < nsteps for tt in range(2)]


def gb_main(k, nsteps, sW, sA, sB, swap, npre, rot, extra=None):
    NG = (nsteps + 1) // 2
    NF = nsteps * 9
    pend = []

    def rd(f):
        s, nt = divmod(f, 9)
        G = s >> 1
        if f % 18 == 0:
            while pend:
                pend.pop(0)()
            k.wait(vm=("dma", G))
            k.e("s_barrier")
            if G in (0, 4):
                k.stamp()
            if G + 2 < NG:
                if G + 2 >= npre:
                    pend.extend(gb_dma_ops(k, G + 2, nsteps, sW, rot))
                pend.extend(gb_act_ops(k, G + 2, nsteps, sA, sB))
            if extra and G in extra:
                pend.extend(extra[G])
        k.lg(f"ds_read_b128 {wfr(f)}, v{4+((G+rot)&3)} offset:{(s&1)*18432 + nt*1024}", tag=("w", f))

    for f in range(PDW):
        rd(f)
    for f in range(NF):
        s, nt = divmod(f, 9)
        if f + PDW < NF:
            rd(f + PDW)
        k.wait(vm=("act", s) if nt == 0 else None, lg=("w", f))
        for tt in range(2):
            c = "0" if s == 0 else acc(tt, nt)
            if swap:
                k.e(f"v_mfma_f32_16x16x32_bf16 {acc(tt,nt)}, {act(s,tt)}, {wfr(f)}, {c}")
            else:
                k.e(f"v_mfma_f32_16x16x32_bf16 {acc(tt,nt)}, {wfr(f)}, {act(s,tt)}, {c}")
        for _ in range(1 if len(pend) <= 14 else 2):
            if pend:
                pend.pop(0)()
    assert not pend
    k.stamp()


def gb_exchange(k):
    k.e(f"""
    s_mul_i32 s26, s16, 9216
    v_add_u32 v8, s26, v1
    s_xor_b32 s26, s16, 4
    s_mul_i32 s26, s26, 9216
    v_add_u32 v9, s26, v1
    s_barrier
    """)
    for nt in range(9):
        k.lg(f"ds_write_b128 v8, {acc(1,nt)} offset:{nt*1024}")
    k.wait_all(vm=False)
    k.e("s_barrier")
    for nt in range(9):
        k.lg(f"ds_read_b128 {acc(1,nt)}, v9 offset:{nt*1024}", tag=("x", nt))


def gb_xadd(k, nt):
    k.wait(lg=("x", nt))
    for i in range(4):
        a = ACC + nt * 4 + i
        k.e(f"v_add_f32 v{a}, v{a}, v{a+36}")


QSCALE = (18 ** -0.5) * 1.4426950408889634


def phase_qkv(k):
    CSP = TMP
    ST = TMP + 20
    Lend, Lv, Lpub = k.lab("qend"), k.lab("qv"), k.lab("qpub")
    k.e(f"""
    s_cmp_ge_u32 s2, 192
    s_cbranch_scc1 {Lend}
    """)
    k.stamp()
    gb_setup(k)
    k.e(f"""
    s_and_b32 s31, s2, 1
    s_lshl_b32 s31, s31, 3
    s_bfe_u32 s32, s2, 0x30003
    s_add_u32 s31, s31, s32
    s_lshr_b32 s32, s2, 6
    s_lshl_b32 s32, s32, 2
    s_bfe_u32 s33, s2, 0x20001
    s_add_u32 s32, s32, s33
    s_lshl_b32 s47, s33, 6
    s_lshr_b32 s46, s2, 6
    s_lshl_b32 s46, s46, 4
    s_add_u32 s47, s47, s46
    s_add_u32 s47, s47, s31
    s_lshl_b32 s47, s47, 7
    s_add_u32 s47, s47, {F_QKV}
    s_mul_i32 s33, s32, {9*18432}
    s_add_u32 s33, s33, {WQKVP}
    s_lshl_b32 s34, s31, 3
    s_lshl_b32 s35, s17, 1
    s_add_u32 s34, s34, s35
    s_add_u32 s36, s34, s18
    s_xor_b32 s35, s18, 1
    s_add_u32 s37, s34, s35
    s_mul_i32 s35, s18, 9
    s_mul_i32 s38, s36, 18
    s_add_u32 s38, s38, s35
    s_lshl_b32 s38, s38, 10
    s_add_u32 s38, s38, {XA}
    s_mul_i32 s39, s37, 18
    s_add_u32 s39, s39, s35
    s_lshl_b32 s39, s39, 10
    s_add_u32 s39, s39, {XA}
    s_lshl_b32 s27, s31, 11
    s_add_u32 s27, s27, {F_RED}
    s_mul_i32 s40, s32, 576
    s_add_u32 s40, s40, {CSQ}
    s_lshl_b32 s41, s16, 6
    v_add_u32 v12, s41, v0
    v_lshlrev_b32 v10, 2, v12
    v_add_u32 v11, s40, v10
    v_cmp_gt_u32 vcc, 144, v12
    v_mov_b32 v12, {OOB}
    v_add_u32 v10, {CSOFF}, v10
    v_cndmask_b32 v11, v12, v11, vcc
    s_mov_b32 s42, 0
    s_lshl_b32 s41, s36, 9
    s_add_u32 s41, s41, {STA}
    v_lshlrev_b32 v12, 3, v0
    """)
    NPRE = 2
    k.vmq = [("dma", 0)] * 5 + [("dma", 1)] * 5
    k.await_(27, 16, None, skip_layer0=True)
    for G in range(2):
        for o in gb_act_ops(k, G, 9, 38, 39):
            o()

    def csl(kb):
        k.vm(f"buffer_load_dword v{CSP+kb}, v11, {SW}, s42 offen", tag="cs")
        k.e(f"s_add_u32 s42, s42, {12*144*4}")

    def stl():
        k.vm(f"buffer_load_dwordx2 {r(ST,2)}, v12, {SA}, s41 offen {SC}", tag="cs")

    extra = {3: [lambda kb=kb: csl(kb) for kb in range(18)] + [stl]}

    def finish_cs():
        k.wait(vm="cs")
        for i in range(1, 18):
            k.e(f"v_add_f32 v{CSP}, v{CSP}, v{CSP+i}")
        k.lg(f"ds_write_b32 v10, v{CSP}")

    def stats_finish():
        reduce_g(k, ST, ST + 2)
        mean_rstd(k, ST, 12, 13, 14)

    vmq0, lgq0, nst0 = list(k.vmq), list(k.lgq), getattr(k, "nst", 0)
    k.e(f"""
    s_cmp_ge_u32 s32, 8
    s_cbranch_scc1 {Lv}
    """)
    CS = ACT
    gb_main(k, 9, 33, 38, 39, False, NPRE, 2, extra)
    finish_cs()
    gb_exchange(k)
    k.e(f"""
    v_lshlrev_b32 v8, 4, v3
    v_add_u32 v8, {CSOFF}, v8
    """)
    for nt in range(9):
        k.lg(f"ds_read_b128 {r(CS+4*nt,4)}, v8 offset:{nt*64}", tag=("cs", nt))
    k.e(f"""
    s_mov_b32 s42, {hexf(QSCALE)}
    s_cmp_lt_u32 s32, 4
    s_cselect_b32 s42, s42, 1.0
    s_cselect_b32 s43, {QF}, 0
    s_cselect_b32 s44, {QL}, 0
    s_cselect_b32 s45, 0, {KF}
    s_cselect_b32 s46, 0, {KL}
    s_add_u32 s43, s43, s45
    s_add_u32 s44, s44, s46
    s_and_b32 s45, s32, 3
    s_lshl_b32 s46, s45, 19
    s_add_u32 s43, s43, s46
    s_lshr_b32 s46, s36, 1
    s_lshl_b32 s46, s46, 10
    s_add_u32 s43, s43, s46
    s_and_b32 s46, s36, 1
    s_lshl_b32 s46, s46, 8
    s_add_u32 s43, s43, s46
    v_lshrrev_b32 v9, 1, v3
    v_lshlrev_b32 v9, 16, v9
    v_and_b32 v10, 1, v3
    v_lshl_add_u32 v9, v10, 9, v9
    v_lshl_add_u32 v9, v2, 4, v9
    s_lshl_b32 s46, s45, 16
    s_add_u32 s44, s44, s46
    s_lshl_b32 s46, s36, 7
    s_add_u32 s44, s44, s46
    v_lshlrev_b32 v10, 14, v3
    v_lshl_add_u32 v10, v2, 3, v10
    """)
    stats_finish()
    k.e("v_mul_f32 v13, s42, v13")
    for nt in range(9):
        gb_xadd(k, nt)
    for nt in range(9):
        k.wait(lg=("cs", nt))
        for i in range(4):
            a = ACC + nt * 4 + i
            k.e(f"v_fma_f32 v{a}, -v12, v{CS+4*nt+i}, v{a}")
            k.e(f"v_mul_f32 v{a}, v13, v{a}")
        a = ACC + nt * 4
        d = WFR + nt * 2
        k.e(f"v_cvt_pk_bf16_f32 v{d}, v{a}, v{a+1}")
        k.e(f"v_cvt_pk_bf16_f32 v{d+1}, v{a+2}, v{a+3}")
        if nt & 1:
            k.e(f"buffer_store_dwordx4 {r(d-2,4)}, v9, {SA}, s43 offen {SC}")
            k.e(f"s_add_u32 s43, s43, {2*65536}")
        if nt == 8:
            k.e(f"buffer_store_dwordx2 {r(d,2)}, v10, {SA}, s44 offen {SC}")
    k.e(f"s_branch {Lpub}")
    k.label(Lv)
    k.vmq, k.lgq, k.nst = vmq0, lgq0, nst0
    gb_main(k, 9, 33, 38, 39, True, NPRE, 2, extra)
    finish_cs()
    gb_exchange(k)
    k.e(f"""
    v_lshlrev_b32 v8, 2, v2
    v_add_u32 v8, {CSOFF}, v8
    """)
    for nt in range(9):
        k.lg(f"ds_read_b32 v{CS+nt}, v8 offset:{nt*64}", tag=("cs", nt))
    k.e(f"""
    s_sub_u32 s45, s32, 8
    s_lshl_b32 s43, s45, 19
    s_lshl_b32 s46, s36, 9
    s_add_u32 s43, s43, s46
    s_add_u32 s43, s43, {VF}
    s_lshl_b32 s44, s45, 16
    s_add_u32 s44, s44, s46
    s_add_u32 s44, s44, {VT}
    v_and_b32 v10, 31, v0
    v_lshlrev_b32 v10, 4, v10
    v_lshrrev_b32 v9, 1, v3
    v_lshl_add_u32 v9, v9, 16, v10
    v_lshlrev_b32 v11, 4, v3
    """)
    stats_finish()
    MEAN, RSTD = CSP, CSP + 4
    k.e("s_nop 0")
    for i in range(4):
        k.lg(f"ds_bpermute_b32 v{MEAN+i}, v11, v12 offset:{4*i}", tag="bp")
        k.lg(f"ds_bpermute_b32 v{RSTD+i}, v11, v13 offset:{4*i}", tag="bp")
    for nt in range(9):
        gb_xadd(k, nt)
    k.wait(lg="bp")
    for nt in range(9):
        for i in range(4):
            a = ACC + nt * 4 + i
            k.e(f"v_fma_f32 v{a}, -v{MEAN+i}, v{CS+nt}, v{a}")
            k.e(f"v_mul_f32 v{a}, v{RSTD+i}, v{a}")
        a = ACC + nt * 4
        d = WFR + nt * 2
        k.e(f"v_cvt_pk_bf16_f32 v{d}, v{a}, v{a+1}")
        k.e(f"v_cvt_pk_bf16_f32 v{d+1}, v{a+2}, v{a+3}")
        if nt == 8:
            k.e(f"v_mov_b32 v{d+2}, v{d}")
            k.e(f"v_mov_b32 v{d+3}, v{d+1}")
            d += 2
        if nt & 1 or nt == 8:
            k.e(f"v_permlane32_swap_b32 v{d-2}, v{d}")
            k.e(f"v_permlane32_swap_b32 v{d-1}, v{d+1}")
        if nt & 1:
            k.e(f"buffer_store_dwordx4 {r(d-2,4)}, v9, {SA}, s43 offen {SC}")
            k.e(f"s_add_u32 s43, s43, {2*65536}")
        elif nt == 8:
            k.e("s_mov_b64 exec, s[22:23]")
            k.e(f"buffer_store_dwordx4 {r(d-2,4)}, v10, {SA}, s44 offen {SC}")
            k.e("s_mov_b64 exec, -1")
    k.label(Lpub)
    k.publish(47, slot=0)
    k.label(Lend)
    k.vmq, k.lgq = [], []


LK1, LV, LK2 = 0, 65536, 65536 + 73728
ATX = 0
FLAGOFF = ATX + 8 * 3072
WOF = 184
W9 = 3 * GSZ
Q1, Q2, K1, K2, VV, PP, CM, SS, OO, NV = 16, 24, 28, 40, 48, 72, 88, 120, 152, 184
PRIO_U = int(os.environ.get("PRIO_U", "56"))


def phase_attn(k):
    k.stamp()
    k.lane_setup(half32=True)
    k.e(f"""
    s_and_b32 s17, s16, 3
    s_lshr_b32 s18, s16, 2
    s_and_b32 s19, s2, 7
    s_lshl_b32 s19, s19, 2
    s_bfe_u32 s20, s2, 0x20003
    s_add_u32 s19, s19, s20
    s_lshr_b32 s20, s2, 5
    s_lshl_b32 s21, s20, 3
    s_lshl_b32 s22, s17, 1
    s_add_u32 s21, s21, s22
    s_add_u32 s22, s21, s18
    s_xor_b32 s23, s18, 1
    s_add_u32 s23, s21, s23
    s_lshl_b32 s24, s19, 16
    s_lshr_b32 s25, s19, 1
    s_lshl_b32 s25, s25, 14
    s_and_b32 s26, s19, 1
    s_lshl_b32 s26, s26, 2
    s_add_u32 s25, s25, s26
    v_lshlrev_b32 v4, 3, v2
    s_mov_b32 s28, -1
    s_mov_b32 s29, 0
    s_mov_b32 s30, 0x3ffff
    s_mov_b32 s31, 0x3ffff
    s_mov_b32 s44, 0
    v_cmp_eq_u32 vcc, 18, v2
    v_cmp_eq_u32 s[32:33], 20, v2
    v_mov_b32 v6, 0x3f803f80
    s_or_b64 vcc, vcc, s[32:33]
    s_lshl_b32 s32, s22, 10
    s_add_u32 s32, s32, s24
    s_add_u32 s32, s32, {QF}
    s_lshl_b32 s33, s23, 10
    s_add_u32 s33, s33, s24
    s_add_u32 s33, s33, {QF}
    s_lshl_b32 s35, s22, 8
    s_add_u32 s35, s35, s25
    s_add_u32 s35, s35, {QL}
    s_lshl_b32 s36, s23, 8
    s_add_u32 s36, s36, s25
    s_add_u32 s36, s36, {QL}
    v_cndmask_b32 v6, 0, v6, vcc
    v_mov_b32 v{PP+5}, 0
    s_lshr_b32 s27, s19, 3
    s_lshl_b32 s27, s27, 13
    s_add_u32 s27, s27, {F_QKV}
    s_lshl_b32 s26, s20, 5
    s_add_u32 s26, s26, s19
    s_lshl_b32 s26, s26, 7
    s_add_u32 s26, s26, {F_ATT}
    """)
    for i in range(4):
        k.e(f"v_mov_b32 v{Q2+i}, 0")
    for i in range(4):
        k.e(f"v_mov_b32 v{K2+i}, 0")
    for i in range(16):
        k.e(f"v_mov_b32 v{VV+i}, v6")
    k.e(f"""
    s_lshl_b32 s45, s16, 10
    s_add_u32 s34, s24, s45
    s_add_u32 s34, s34, {KF}
    s_lshl_b32 s46, s17, 8
    s_lshl_b32 s47, s18, 12
    s_add_u32 s46, s46, s47
    s_lshl_b32 s37, s46, 1
    s_add_u32 s37, s37, s25
    s_add_u32 s37, s37, {KL}
    s_add_u32 s46, s46, {LK2}
    s_add_u32 s38, s24, {VF}
    s_lshr_b32 s39, s19, 3
    s_lshl_b32 s39, s39, 16
    s_and_b32 s42, s19, 7
    s_lshl_b32 s42, s42, 5
    s_add_u32 s39, s39, s42
    s_sub_u32 s39, s39, s24
    s_add_u32 s39, s39, {VT - VF - 256}
    s_lshl_b32 s41, s16, 6
    v_lshlrev_b32 v7, 3, v0
    """)
    for dst, base in ((8, "s41"), (9, "512")):
        k.e(f"""
        v_add_u32 v10, {base}, v0
        v_mul_u32_u24 v11, 3641, v10
        v_lshrrev_b32 v11, 16, v11
        v_mul_u32_u24 v12, 18, v11
        v_sub_u32 v12, v10, v12
        v_cmp_gt_u32 vcc, 16, v12
        v_lshlrev_b32 v{dst}, 8, v11
        v_lshl_add_u32 v{dst}, v12, 4, v{dst}
        v_mov_b32 v10, s39
        v_cndmask_b32 v10, v10, 0, vcc
        v_add_u32 v{dst}, v{dst}, v10
        """)
    k.e(f"""
    s_mul_i32 s41, s18, 36864
    s_add_u32 s41, s41, {LV}
    v_mul_u32_u24 v5, 288, v3
    v_lshl_add_u32 v5, v2, 4, v5
    v_add_u32 v5, s41, v5
    s_lshl_b32 s41, s18, 15
    v_add_u32 v10, s41, v1
    s_lshl_b32 s41, s18, 12
    v_lshlrev_b32 v12, 2, v2
    v_add_u32 v12, {LK2}, v12
    v_add_u32 v11, s41, v12
    """)
    PA = NV
    PD = PA + 8
    PO = PD + 32
    PN = PO + 8
    PC = PN + 4
    Lnp = k.lab("anp")
    k.e(f"""
    s_cmp_lg_u32 s{LAY}, 0
    s_cbranch_scc1 {Lnp}
    s_lshl_b32 s{PS+28}, s2, 3
    s_add_u32 s{PS+28}, s{PS+28}, s16
    s_mov_b32 s{PS+29}, 0x05040100
    s_mov_b32 s{PS+30}, 0x07060302
    """)
    ffn_task_setup(k, k.lab("t_"), PS + 28, PS, PA, 0)
    for i in range(4):
        k.e(f"v_mov_b32 v{PN+i}, 0x3f803f80")
    k.label(Lnp)
    k.e(f"""
    s_and_b32 s41, s2, 1
    s_lshl_b32 s41, s41, 1
    s_lshr_b32 s42, s2, 7
    s_add_u32 s41, s41, s42
    s_mul_i32 s41, s41, 9
    s_add_u32 s41, s41, s16
    s_mul_i32 s17, s41, {18*1024}
    s_add_u32 s17, s17, {WOP}
    """)
    k.await_(27, 48)
    k.vm(f"buffer_load_dwordx4 {r(Q1,4)}, v1, {SA}, s32 offen {SC}")
    k.vm(f"buffer_load_dwordx4 {r(Q1+4,4)}, v1, {SA}, s33 offen {SC}")
    k.e("s_mov_b64 exec, s[28:29]")
    k.vm(f"buffer_load_dword v{Q2}, v4, {SA}, s35 offen {SC}")
    k.vm(f"buffer_load_dword v{Q2+2}, v4, {SA}, s36 offen {SC}")
    k.e("s_mov_b64 exec, -1")

    def fill_lds():
        order = [0, 4, 1, 5, 2, 6, 3, 7]
        for n, p in enumerate(order):
            tg = "A" if n < 2 else "B"
            k.e(f"s_add_u32 m0, s45, {LK1 + p*8192}")
            k.e(f"s_add_u32 s41, s34, {p*8192}")
            k.vm(f"buffer_load_dwordx4 v1, {SA}, s41 offen {SC} lds", tag=tg)
            if n % 2 == 0:
                k.e(f"s_add_u32 m0, s46, {p*1024}")
                k.e(f"s_add_u32 s41, s37, {p*2048}")
                k.vm(f"buffer_load_dword v7, {SA}, s41 offen {SC} lds", tag=tg)
            k.e(f"s_add_u32 m0, s45, {LV + p*9216}")
            k.e(f"s_add_u32 s41, s38, {p*8192}")
            k.vm(f"buffer_load_dwordx4 v8, {SA}, s41 offen {SC} lds", tag=tg)
            if n == 1:
                k.e(f"""
                s_mul_i32 s41, s16, 9216
                s_add_u32 m0, s41, {LV + 8192}
                s_lshl_b32 s41, s16, 13
                s_add_u32 s41, s41, s38
                """)
                k.vm(f"buffer_load_dwordx4 v9, {SA}, s41 offen {SC} lds", tag=tg)
    fill_lds()
    k.wait(vm="A")
    k.e("s_barrier")

    def load_k(kt):
        b = kt & 1
        k.lg(f"ds_read_b128 {r(K1+4*b,4)}, v10 offset:{kt*1024}", tag=("k", kt))
        k.lg(f"ds_read_b32 v{K2+2*b}, v11 offset:{kt*128}", tag=("k", kt))

    def load_v(kt):
        b = kt & 1
        k.e("s_mov_b64 exec, s[30:31]")
        k.lg(f"ds_read_b128 {r(VV+8*b,4)}, v5 offset:{kt*1152}", tag=("v", kt))
        k.lg(f"ds_read_b128 {r(VV+8*b+4,4)}, v5 offset:{kt*1152+576}", tag=("v", kt))
        k.e("s_mov_b64 exec, -1")

    k.lg(f"ds_read_b128 {r(PP,4)}, v1")
    k.lg(f"ds_read_b32 v{PP+4}, v12")
    k.wait_all(vm=False)
    for qt in range(2):
        k.e(f"v_mfma_f32_32x32x16_bf16 {r(SS+16*qt,16)}, {r(PP,4)}, {r(Q1+4*qt,4)}, 0")
        k.e(f"v_mfma_f32_32x32x8_bf16 {r(SS+16*qt,16)}, {r(PP+4,2)}, {r(Q2+2*qt,2)}, {r(SS+16*qt,16)}")
    for qt in range(2):
        s = SS + 16 * qt
        k.e(f"v_max3_f32 v{14+qt}, v{s}, v{s+1}, v{s+2}")
        for i in range(3, 15, 2):
            k.e(f"v_max3_f32 v{14+qt}, v{14+qt}, v{s+i}, v{s+i+1}")
        k.e(f"v_max_f32 v{14+qt}, v{14+qt}, v{s+15}")
    Lset, Lplain, Ltail, Lfb, Lfl, Ldone, Lnpr = (k.lab(x) for x in ("setmax", "plain", "tail", "fb", "fbl", "adone", "npr"))
    k.label(Lset)
    load_k(0)
    load_k(1)
    load_v(0)
    k.e(f"""
    v_mov_b32 v{CM}, v14
    v_mov_b32 v{CM+1}, v15
    s_cmp_lt_u32 s16, 4
    s_cbranch_scc1 {Lnpr}
    s_setprio 1
    """)
    k.label(Lnpr)
    k.e(f"""
    v_permlane32_swap_b32 v14, v{CM}
    v_permlane32_swap_b32 v15, v{CM+1}
    v_max_f32 v14, v14, v{CM}
    v_max_f32 v15, v15, v{CM+1}
    """)
    for i in range(16):
        k.e(f"v_sub_f32 v{CM+i}, 0, v14")
    NU = 64

    def qk(u, part):
        kt, qt = u >> 1, u & 1
        b = kt & 1
        s = r(SS + 16 * (u & 1), 16)
        if part == 0:
            if qt == 0:
                k.wait(lg=("k", kt))
            k.e(f"v_mfma_f32_32x32x16_bf16 {s}, {r(K1+4*b,4)}, {r(Q1+4*qt,4)}, {r(CM+16*qt,16)}")
        else:
            k.e(f"v_mfma_f32_32x32x8_bf16 {s}, {r(K2+2*b,2)}, {r(Q2+2*qt,2)}, {s}")

    def pv(u, part):
        kt, qt = u >> 1, u & 1
        b = kt & 1
        o = r(OO + 16 * qt, 16)
        if part == 0 and qt == 0:
            k.wait(lg=("v", kt))
        c = "0" if (kt == 0 and part == 0) else o
        k.e(f"v_mfma_f32_32x32x16_bf16 {o}, {r(VV+8*b+4*part,4)}, {r(PP+8*(u&1)+4*part,4)}, {c}")

    qk(0, 0)
    qk(0, 1)
    for i in range(16):
        k.e(f"v_sub_f32 v{CM+16+i}, 0, v15")
    k.stamp()

    def main(prep):
        PU0 = 40

        def wl(kb):
            if kb == 0:
                k.e("s_mov_b32 s43, s17")
            if kb % 4 == 0 and kb:
                k.e("s_add_u32 s43, s43, 4096")
            k.vm(f"buffer_load_dwordx4 {r(WOF+4*kb,4)}, v1, {SW}, s43 offen offset:{1024*(kb%4)}")
        wo_ops = [lambda kb=kb: wl(kb) for kb in range(18)]
        for u in range(NU):
            if u >= 52:
                for _ in range(2):
                    if wo_ops:
                        wo_ops.pop(0)()
            if u == PRIO_U:
                k.e("s_setprio 0")
            s = SS + 16 * (u & 1)
            p = PP + 8 * (u & 1)
            ops = []
            for i in range(16):
                ops.append(f"v_exp_f32 v{s+i}, v{s+i}")
                if i >= 3 and i % 2 == 1:
                    j = (i - 3) // 2
                    ops.append(f"v_cvt_pk_bf16_f32 v{p+j}, v{s+2*j}, v{s+2*j+1}")
            ops.append(f"v_cvt_pk_bf16_f32 v{p+7}, v{s+14}, v{s+15}")
            kt = u >> 1
            if u == 11:
                k.wait(vm="B")
                k.e("s_barrier")
            if u & 1:
                if kt + 2 < 32:
                    load_k(kt + 2)
                if kt + 1 < 32:
                    load_v(kt + 1)
            if prep:
                if 12 <= u < 28 and u % 2 == 0:
                    j = (u - 12) // 2
                    k.vm(f"buffer_load_dwordx4 {r(PD+4*j,4)}, v{PA}, s[{PS}:{PS+3}], s{PS+4+j} offen", tag="pd")
                c = u - PU0
                if 0 <= c < 8:
                    k.wait(vm="pd")
                    o = PO + 4 * (c & 1)
                    for jp in range(4):
                        k.e(f"v_perm_b32 v{o+jp}, v{PD+4*(2*jp+1)+(c>>1)}, v{PD+4*(2*jp)+(c>>1)}, s{PS+29+(c&1)}")
                    k.vm(f"buffer_store_dwordx4 {r(o,4)}, v{PA+1+(c>>2)}, {SW}, s{PS+12+(c&3)} offen {SC}")
                if 1 <= c < 9:
                    k.vm(f"buffer_store_dword v{PC+4*((c-1)&1)}, v{PA+3}, {SW}, 0 offen offset:{128*(c-1)} {SC}")
                if 0 <= c < 8:
                    k.e(f"v_mfma_f32_16x16x32_bf16 {r(PC+4*(c&1),4)}, {r(PN,4)}, {r(PO+4*(c&1),4)}, 0")
            ms = []
            if u + 1 < NU:
                ms += [lambda: qk(u + 1, 0), lambda: qk(u + 1, 1)]
            if u >= 1:
                ms += [lambda: pv(u - 1, 0), lambda: pv(u - 1, 1)]
            pos = {0: 0, 5: 1, 11: 2, 17: 3}
            for i, o in enumerate(ops):
                if i in pos and pos[i] < len(ms):
                    ms[pos[i]]()
                k.e(o)
        pv(NU - 1, 0)
        pv(NU - 1, 1)

    q0, l0 = list(k.vmq), list(k.lgq)
    k.e(f"""
    s_or_b32 s41, s{LAY}, s44
    s_cbranch_scc1 {Lplain}
    """)
    main(True)
    k.e(f"s_branch {Ltail}")
    k.label(Lplain)
    k.vmq, k.lgq = q0, l0
    main(False)
    k.label(Ltail)
    k.vmq = []
    k.stamp()
    FL = LK2 + 8192
    k.e(f"""
    v_cmp_eq_u32 vcc, 0, v3
    s_lshl_b32 s41, s16, 2
    s_add_u32 s41, s41, {FL}
    v_mov_b32 v13, s41
    v_mov_b32 v{SS+8}, {hexf(2.0**60)}
    s_mul_i32 s41, s16, 3072
    v_add_u32 v{SS+10}, s41, v1
    s_xor_b32 s41, s16, 4
    s_mul_i32 s41, s41, 3072
    v_add_u32 v{SS+11}, s41, v1
    v_cndmask_b32 v14, v{OO+8}, v{OO+10}, vcc
    v_cndmask_b32 v15, v{OO+24}, v{OO+26}, vcc
    v_cmp_nlt_f32 s[32:33], v14, v{SS+8}
    v_cmp_nlt_f32 s[34:35], v15, v{SS+8}
    s_or_b64 s[32:33], s[32:33], s[34:35]
    s_cmp_lg_u64 s[32:33], 0
    s_cselect_b32 s41, 1, 0
    v_mov_b32 v14, s41
    """)
    k.lg(f"ds_write_b32 v13, v14")
    k.e(f"""
    v_mov_b32 v13, {FL}
    s_lshl_b32 s41, s22, 1
    s_mul_i32 s41, s41, {18*1024}
    s_add_u32 s41, s41, {OB}
    s_lshr_b32 s42, s19, 1
    s_lshl_b32 s42, s42, 10
    s_and_b32 s43, s19, 1
    s_lshl_b32 s43, s43, 9
    s_add_u32 s42, s42, s43
    s_add_u32 s42, s42, s41
    v_lshrrev_b32 v14, 4, v2
    v_mul_u32_u24 v14, {18*1024}, v14
    v_and_b32 v15, 15, v2
    v_lshl_add_u32 v14, v15, 4, v14
    v_lshl_add_u32 v15, v3, 8, v14
    v_lshlrev_b32 v14, 2, v2
    s_lshl_b32 s41, s19, 13
    s_lshl_b32 s43, s22, 7
    s_add_u32 s41, s41, s43
    s_add_u32 s41, s41, {OL}
    """)
    k.wait_all(vm=False)
    k.e("s_barrier")
    k.lg(f"ds_read_b128 {r(SS,4)}, v13")
    k.lg(f"ds_read_b128 {r(SS+4,4)}, v13 offset:16")
    k.wait_all(vm=False)
    k.e(f"""
    v_or3_b32 v13, v{SS}, v{SS+1}, v{SS+2}
    v_or3_b32 v13, v13, v{SS+3}, v{SS+4}
    v_or3_b32 v13, v13, v{SS+5}, v{SS+6}
    v_or_b32 v13, v13, v{SS+7}
    s_nop 0
    v_readfirstlane_b32 s43, v13
    s_andn2_b32 s43, s43, s44
    s_cmp_lg_u32 s43, 0
    s_cbranch_scc1 {Lfb}
    """)
    for i in range(3):
        k.lg(f"ds_write_b128 v{SS+10}, {r(OO+16+4*i,4)} offset:{1024*i}")
    k.wait_all(vm=False)
    k.e("s_barrier")
    for i in range(3):
        k.lg(f"ds_read_b128 {r(OO+16+4*(2-i),4)}, v{SS+11} offset:{1024*(2-i)}", tag=("ox", 2 - i))
    k.wait(lg=("ox", 2))
    k.e(f"""
    v_add_f32 v{OO+8}, v{OO+8}, v{OO+24}
    v_add_f32 v{OO+10}, v{OO+10}, v{OO+26}
    v_add_f32 v{OO+9}, v{OO+9}, v{OO+25}
    v_cndmask_b32 v13, v{OO+8}, v{OO+10}, vcc
    v_rcp_f32 v13, v13
    """)
    k.wait_all(vm=False)
    for i in range(8):
        k.e(f"v_add_f32 v{OO+i}, v{OO+i}, v{OO+16+i}")
    for i in range(10):
        k.e(f"v_mul_f32 v{OO+i}, v{OO+i}, v13")
    for i in range(5):
        k.e(f"v_cvt_pk_bf16_f32 v{PP+i}, v{OO+2*i}, v{OO+2*i+1}")
    k.e(f"""
    buffer_store_dwordx4 {r(PP,4)}, v15, {SA}, s42 offen {SC}
    s_mov_b64 exec, s[28:29]
    buffer_store_dword v{PP+4}, v14, {SA}, s41 offen {SC}
    s_mov_b64 exec, -1
    s_branch {Ldone}
    """)
    k.label(Lfb)
    k.e(f"""
    s_mov_b32 s44, 1
    s_mov_b32 s41, 64
    v_mov_b32 v14, 0xff800000
    v_mov_b32 v15, 0xff800000
    v_mov_b32 v8, v1
    v_mov_b32 v9, v12
    """)
    k.label(Lfl)
    k.e(f"""
    ds_read_b128 {r(K1,4)}, v8
    ds_read_b32 v{K2}, v9
    v_add_u32 v8, 1024, v8
    v_add_u32 v9, 128, v9
    s_waitcnt lgkmcnt(0)
    """)
    for qt in range(2):
        k.e(f"v_mfma_f32_32x32x16_bf16 {r(SS+16*qt,16)}, {r(K1,4)}, {r(Q1+4*qt,4)}, 0")
        k.e(f"v_mfma_f32_32x32x8_bf16 {r(SS+16*qt,16)}, {r(K2,2)}, {r(Q2+2*qt,2)}, {r(SS+16*qt,16)}")
    for qt in range(2):
        s = SS + 16 * qt
        for i in range(0, 16, 2):
            k.e(f"v_max3_f32 v{14+qt}, v{14+qt}, v{s+i}, v{s+i+1}")
    k.e(f"""
    s_sub_u32 s41, s41, 1
    s_cmp_lg_u32 s41, 0
    s_cbranch_scc1 {Lfl}
    s_branch {Lset}
    """)
    k.label(Ldone)
    k.vmq, k.lgq = [], []
    k.publish(26, slot=1)


def phase_wo(k):
    WF, OF, AC, XR = WOF, 88, 112, 124
    DD, TT = 132, 136
    OT = 2 * GSZ
    k.stamp()
    k.lane_setup()
    k.e(f"""
    s_bfe_u32 s17, s2, 0x20001
    s_lshl_b32 s17, s17, 4
    s_bfe_u32 s18, s2, 0x40003
    s_add_u32 s17, s17, s18
    s_and_b32 s18, s2, 1
    s_lshl_b32 s18, s18, 1
    s_lshr_b32 s19, s2, 7
    s_add_u32 s18, s18, s19
    s_mul_i32 s19, s18, 9
    s_add_u32 s31, s19, 8
    s_add_u32 s19, s19, s16
    s_mul_i32 s42, s17, 36864
    s_lshr_b32 s21, s16, 2
    s_mul_i32 s21, s21, 18432
    s_and_b32 s24, s16, 3
    s_lshl_b32 s24, s24, 12
    s_add_u32 s21, s21, s24
    s_add_u32 s43, s42, s21
    s_add_u32 s43, s43, {OB}
    s_lshl_b32 s32, s16, 15
    s_lshl_b32 s33, s17, 7
    s_add_u32 s32, s32, s33
    s_add_u32 s32, s32, {OL}
    s_lshl_b32 s33, s16, 8
    s_add_u32 s33, s33, {OT + 16384}
    v_and_b32 v7, 3, v0
    v_lshlrev_b32 v7, 13, v7
    v_and_b32 v8, 60, v0
    v_add_u32 v7, v7, v8
    s_lshl_b32 s24, s19, 9
    s_add_u32 s24, s24, s42
    v_lshrrev_b32 v4, 1, v3
    v_lshlrev_b32 v4, 8, v4
    v_lshl_add_u32 v4, v2, 4, v4
    v_and_b32 v5, 1, v3
    v_mul_u32_u24 v8, 18432, v5
    v_add_u32 v8, v8, v4
    v_lshl_add_u32 v4, v5, 3, v4
    s_add_u32 s25, s24, {XA}
    s_add_u32 s27, s24, {XB}
    s_and_b32 s34, s16, 1
    s_mul_i32 s34, s34, 18432
    s_lshl_b32 s35, s31, 9
    s_add_u32 s35, s35, s42
    s_add_u32 s35, s35, s34
    s_add_u32 s36, s35, {XB}
    s_add_u32 s35, s35, {XA}
    s_add_u32 s34, s34, {OT}
    v_add_u32 v6, s34, v1
    v_add_u32 v5, {OT}, v1
    v_add_u32 v9, {W9}, v1
    s_lshr_b32 s40, s17, 3
    s_lshl_b32 s40, s40, 12
    s_add_u32 s40, s40, {F_ATT}
    s_lshl_b32 s37, s17, 2
    s_add_u32 s37, s37, s18
    s_lshl_b32 s37, s37, 7
    s_add_u32 s37, s37, {F_WO}
    s_mul_i32 s29, s17, 9216
    s_add_u32 s29, s29, {STB}
    s_lshl_b32 s30, s31, 8
    s_add_u32 s41, s29, s30
    s_and_b32 s30, s16, 1
    s_lshl_b32 s30, s30, 3
    s_add_u32 s41, s41, s30
    s_lshl_b32 s30, s19, 8
    s_add_u32 s29, s29, s30
    s_and_b32 s44, s2, 3
    s_lshl_b32 s44, s44, 3
    s_bfe_u32 s45, s2, 0x30003
    s_add_u32 s44, s44, s45
    s_mul_i32 s44, s44, {9*GSZ}
    s_add_u32 s44, s44, {W13P}
    s_mul_i32 s20, s16, 4608
    s_mov_b32 s22, -1
    s_mov_b32 s23, 0
    """)

    def pre():
        k.e(f"""
        s_mul_i32 s45, s16, 2304
        s_add_u32 m0, s45, {W9}
        s_mul_i32 s46, s31, {18*1024}
        s_add_u32 s45, s45, s46
        s_add_u32 s45, s45, {WOP}
        """)
        k.vm(f"buffer_load_dwordx4 v1, {SW}, s45 offen lds")
        k.vm(f"buffer_load_dwordx4 v1, {SW}, s45 offen offset:1024 lds")
        k.e("s_mov_b64 exec, 0xffff")
        k.vm(f"buffer_load_dwordx4 v1, {SW}, s45 offen offset:2048 lds")
        k.e("s_mov_b64 exec, -1")
        k.vm(f"buffer_load_dwordx4 {r(XR,4)}, v8, {SA}, s25 offen {SC}", tag="x")
        k.vm(f"buffer_load_dwordx2 {r(XR+4,2)}, v4, {SA}, s35 offen {SC}", tag="x")
    k.await_(40, 32, pre, all_layer0=F_ATT)
    k.e(f"s_add_u32 m0, s21, {OT}")
    k.e("s_nop 0")
    for i in range(4):
        k.vm(f"buffer_load_dwordx4 v1, {SA}, s43 offen offset:{1024*i} {SC} lds", tag="o")
    k.e(f"s_mov_b32 m0, s33")
    k.e("s_nop 0")
    k.vm(f"buffer_load_dword v7, {SA}, s32 offen {SC} lds", tag="o")
    k.e(f"s_add_u32 m0, s33, 18432")
    k.e(f"s_add_u32 s32, s32, 64")
    k.vm(f"buffer_load_dword v7, {SA}, s32 offen {SC} lds", tag="o")
    f1q = gb_dma_ops(k, 0, 18, 44, 0, "f1") + gb_dma_ops(k, 1, 18, 44, 0, "f1")
    k.e(f"v_mov_b32 v14, 0x3f803f80")
    k.wait(vm="o")
    k.e("s_barrier")
    k.stamp()

    def rd(f):
        kb, tt = f >> 1, f & 1
        k.lg(f"ds_read_b128 {r(OF+4*(f%6),4)}, v5 offset:{tt*18432 + kb*1024}", tag=("o", f))

    for f in range(4):
        rd(f)
    for f in range(36):
        kb, tt = f >> 1, f & 1
        if f + 4 < 36:
            rd(f + 4)
        k.wait(lg=("o", f))
        c = "0" if kb == 0 else r(AC + 4 * tt, 4)
        k.e(f"v_mfma_f32_16x16x32_bf16 {r(AC+4*tt,4)}, {r(WF+4*kb,4)}, {r(OF+4*(f%6),4)}, {c}")
        if f1q and f % 3 == 0:
            f1q.pop(0)()
    L9 = k.lab("w9")
    k.e(f"""
    s_cmp_ge_u32 s16, 2
    s_cbranch_scc1 {L9}
    """)
    for kb in range(18):
        k.lg(f"ds_read_b128 {r(WF+4*kb,4)}, v9 offset:{kb*1024}", tag=("a", kb))
        k.lg(f"ds_read_b128 {r(16+4*kb,4)}, v6 offset:{kb*1024}", tag=("a", kb))
        if kb >= 3:
            j = kb - 3
            k.wait(lg=("a", j))
            k.e(f"v_mfma_f32_16x16x32_bf16 {r(AC+8,4)}, {r(WF+4*j,4)}, {r(16+4*j,4)}, {'0' if j == 0 else r(AC+8,4)}")
    for j in range(15, 18):
        k.wait(lg=("a", j))
        k.e(f"v_mfma_f32_16x16x32_bf16 {r(AC+8,4)}, {r(WF+4*j,4)}, {r(16+4*j,4)}, {r(AC+8,4)}")
    resid_round(k, [AC + 8 + i for i in range(4)], XR + 4, DD, TT)
    k.e(f"""
    buffer_store_dwordx2 {r(DD,2)}, v4, {SA}, s36 offen {SC}
    v_mov_b32 v10, 0
    v_mov_b32 v11, 0
    v_dot2c_f32_bf16 v10, v{DD}, v14
    v_dot2c_f32_bf16 v11, v{DD}, v{DD}
    v_dot2c_f32_bf16 v10, v{DD+1}, v14
    v_dot2c_f32_bf16 v11, v{DD+1}, v{DD+1}
    s_nop 2
    """)
    reduce_g(k, 10, 12)
    k.e(f"""
    s_mov_b64 exec, 0xffff
    buffer_store_dwordx2 v[10:11], v1, {SA}, s41 offen {SC}
    s_mov_b64 exec, -1
    """)
    k.label(L9)
    k.lgq = []
    for i in range(4):
        k.e(f"v_permlane16_swap_b32 v{AC+i}, v{AC+4+i}")
    resid_round(k, [AC + i for i in range(4)], XR, DD, TT)
    resid_round(k, [AC + 4 + i for i in range(4)], XR + 2, DD + 2, TT)
    k.e(f"""
    buffer_store_dwordx4 {r(DD,4)}, v8, {SA}, s27 offen {SC}
    v_mov_b32 v{TT}, 0
    v_mov_b32 v{TT+1}, 0
    """)
    for i in range(4):
        k.e(f"v_dot2c_f32_bf16 v{TT}, v{DD+i}, v14")
        k.e(f"v_dot2c_f32_bf16 v{TT+1}, v{DD+i}, v{DD+i}")
    k.e(f"""
    s_nop 2
    v_mov_b32 v{TT+2}, v{TT}
    v_mov_b32 v{TT+3}, v{TT+1}
    v_permlane32_swap_b32 v{TT}, v{TT+2}
    v_permlane32_swap_b32 v{TT+1}, v{TT+3}
    v_add_f32 v{TT}, v{TT}, v{TT+2}
    v_add_f32 v{TT+1}, v{TT+1}, v{TT+3}
    v_mov_b32 v{TT+2}, v{TT}
    v_mov_b32 v{TT+3}, v{TT+1}
    v_permlane16_swap_b32 v{TT}, v{TT+2}
    v_permlane16_swap_b32 v{TT+1}, v{TT+3}
    s_mov_b64 exec, 0xffff
    buffer_store_dwordx4 {r(TT,4)}, v1, {SA}, s29 offen {SC}
    s_mov_b64 exec, -1
    """)
    k.publish(37, slot=2)


STG = 36864
F1_CS = 4 * STG


def phase_ffn1(k):
    XF = 16
    AC = XF + 144
    WF = AC + 48
    CV = WF + 24
    HP = CV + 8
    TM = HP + 8
    NM = 8

    def xf(tt, kb):
        return r(XF + (tt * 18 + kb) * 4, 4)

    def ac(st, tt, mt):
        return AC + ((st * 2 + tt) * 2 + mt) * 4

    k.stamp()
    k.lane_setup()
    k.e(f"""
    v_mov_b32 v4, v1
    v_add_u32 v5, {STG}, v1
    v_add_u32 v6, {2*STG}, v1
    v_add_u32 v7, {3*STG}, v1
    s_and_b32 s17, s2, 3
    s_lshl_b32 s17, s17, 3
    s_bfe_u32 s18, s2, 0x30003
    s_add_u32 s17, s17, s18
    s_bfe_u32 s18, s2, 0x10002
    s_lshl_b32 s18, s18, 2
    s_lshr_b32 s19, s2, 6
    s_add_u32 s18, s18, s19
    s_lshl_b32 s39, s18, 12
    s_lshl_b32 s40, s17, 7
    s_add_u32 s40, s40, s39
    s_add_u32 s40, s40, {F_F1}
    s_add_u32 s39, s39, {F_WO}
    s_lshl_b32 s19, s18, 4
    s_lshl_b32 s20, s16, 1
    s_add_u32 s19, s19, s20
    s_mul_i32 s20, s16, 4608
    s_mul_i32 s35, s17, {9*STG}
    s_add_u32 s35, s35, {W13P}
    s_add_u32 s21, s35, s20
    s_mov_b32 s22, -1
    s_mov_b32 s23, 0
    s_mul_i32 s24, s19, {18*1024}
    s_add_u32 s24, s24, {XB}
    s_add_u32 s25, s24, {18*1024}
    s_mul_i32 s28, s17, {9*128}
    s_add_u32 s28, s28, {CS13}
    s_lshl_b32 s29, s16, 6
    v_add_u32 v8, s29, v0
    v_lshlrev_b32 v12, 2, v8
    v_add_u32 v9, s28, v12
    v_cmp_gt_u32 vcc, 288, v8
    v_mov_b32 v8, {OOB}
    s_mov_b32 s29, 0
    v_cndmask_b32 v9, v8, v9, vcc
    s_mul_i32 s30, s19, {144*1024}
    s_add_u32 s30, s30, {HB}
    s_lshr_b32 s31, s17, 1
    s_mul_i32 s31, s31, 9216
    s_add_u32 s30, s30, s31
    s_and_b32 s31, s17, 1
    s_lshl_b32 s32, s31, 12
    s_add_u32 s33, s30, s32
    s_add_u32 s34, s33, {144*1024}
    s_lshl_b32 s31, s31, 9
    s_add_u32 s30, s30, s31
    s_add_u32 s30, s30, 8192
    v_lshlrev_b32 v15, 4, v3
    v_add_u32 v15, {F1_CS}, v15
    s_mul_i32 s27, s19, 4608
    s_add_u32 s27, s27, {STB}
    v_and_b32 v10, 1, v3
    v_mul_u32_u24 v10, {144*1024}, v10
    v_lshrrev_b32 v3, 1, v3
    v_lshl_add_u32 v3, v3, 8, v10
    v_lshl_add_u32 v3, v2, 4, v3
    s_lshr_b32 s41, s2, 6
    s_lshl_b32 s41, s41, 2
    s_and_b32 s42, s2, 3
    s_add_u32 s41, s41, s42
    s_mul_i32 s41, s41, {18*18432}
    s_add_u32 s41, s41, {W2P}
    """)

    def dma_ops(t):
        def piece(i):
            if i == 0:
                k.e(f"""
                s_add_u32 m0, s20, {(t&3)*STG}
                s_add_u32 s26, s21, {t*STG}
                """)
            k.vm(f"buffer_load_dwordx4 v1, {SW}, s26 offen offset:{1024*i} {SC} lds", tag=("dma", t))

        def last():
            k.e(f"""
            s_add_u32 m0, m0, 4096
            s_add_u32 s26, s26, 4096
            s_mov_b64 exec, s[22:23]
            """)
            k.vm(f"buffer_load_dwordx4 v1, {SW}, s26 offen {SC} lds", tag=("dma", t))
            k.e("s_mov_b64 exec, -1")
        return [lambda i=i: piece(i) for i in range(4)] + [last]

    def x_ops(kb):
        def one(tt):
            if kb % 4 == 0 and kb:
                k.e(f"s_add_u32 s{24+tt}, s{24+tt}, 4096")
            k.vm(f"buffer_load_dwordx4 {xf(tt,kb)}, v1, {SA}, s{24+tt} offen offset:{1024*(kb%4)} {SC}", tag=("x", kb))
        return [lambda tt=tt: one(tt) for tt in range(2)]

    CSP = ac(2, 0, 0)
    cs_regs = list(range(CSP, CSP + 16)) + [CV, CV + 1]

    def cs_ops():
        def one(kb):
            k.vm(f"buffer_load_dword v{cs_regs[kb]}, v9, {SW}, s29 offen {SC}", tag="cs")
            k.e(f"s_add_u32 s29, s29, {288*128}")
        return [lambda kb=kb: one(kb) for kb in range(18)]

    def st_ops(half):
        def one(i):
            if i % 4 == 0 and i:
                k.e(f"s_add_u32 s27, s27, 4096")
            k.vm(f"buffer_load_dwordx4 {r(CV+4+4*(i%5),4)}, v1, {SA}, s27 offen offset:{1024*(i%4)} {SC}", tag="st")
        return [lambda i=i: one(i) for i in (range(5) if half == 0 else range(5, 9))]

    def pre():
        for o in cs_ops():
            o()
    k.await_(39, 32, pre)
    k.e(f"v_add_u32 v14, {F1_CS}, v12")

    cnt = {}
    for tg in k.vmq:
        cnt[tg] = cnt.get(tg, 0) + 1
    _vm = k.vm

    def vm_cnt(s, tag=None):
        _vm(s, tag)
        cnt[tag] = cnt.get(tag, 0) + 1
    k.vm = vm_cnt
    loadq = []
    for kb in range(18):
        loadq += x_ops(kb)
    loadq += dma_ops(2) + st_ops(0)
    for _ in range(12):
        loadq.pop(0)()

    def issue_all(tag, n):
        while cnt.get(tag, 0) < n:
            loadq.pop(0)()

    def epi_ops(t):
        st = t % 3
        ops = [("lg", f"ds_read_b128 {r(CV,4)}, v15 offset:{t*128}", ("cv", t)),
               ("lg", f"ds_read_b128 {r(CV+4,4)}, v15 offset:{t*128+64}", ("cv", t)),
               ("nop",), ("nop",), ("nop",), ("nop",),
               ("wait", ("cv", t))]
        for tt in range(2):
            g, u = ac(st, tt, 0), ac(st, tt, 1)
            T = TM + 4 * tt
            for i in range(4):
                ops.append(("e", f"v_fmac_f32 v{g+i}, v{NM+tt}, v{CV+i}"))
            for i in range(4):
                ops.append(("e", f"v_mul_f32 v{T+i}, v{10+tt}, v{g+i}"))
                ops.append(("e", f"v_fmac_f32 v{u+i}, v{NM+tt}, v{CV+4+i}"))
            for i in range(4):
                ops.append(("e", f"v_exp_f32 v{T+i}, v{T+i}"))
                ops.append(("e", f"v_mul_f32 v{g+i}, v{g+i}, v{u+i}"))
            for i in range(4):
                ops.append(("e", f"v_fma_f32 v{T+i}, v{T+i}, v{12+tt}, v{12+tt}"))
            for i in range(4):
                ops.append(("e", f"v_rcp_f32 v{T+i}, v{T+i}"))
            ops.append(("nop",))
            for i in range(4):
                ops.append(("e", f"v_mul_f32 v{g+i}, v{g+i}, v{T+i}"))
            h = HP + 4 * tt + 2 * (t & 1) if t < 8 else HP + 2 * tt
            ops.append(("e", f"v_cvt_pk_bf16_f32 v{h}, v{g}, v{g+1}"))
            ops.append(("e", f"v_cvt_pk_bf16_f32 v{h+1}, v{g+2}, v{g+3}"))
            if t == 8:
                if tt == 1:
                    ops.append(("e", f"v_permlane16_swap_b32 v{HP}, v{HP+2}"))
                    ops.append(("e", f"v_permlane16_swap_b32 v{HP+1}, v{HP+3}"))
                    ops.append(("vm", f"buffer_store_dwordx4 {r(HP,4)}, v3, {SA}, s30 offen {SC}"))
            elif t & 1:
                ops.append(("vm", f"buffer_store_dwordx4 {r(h-2,4)}, v1, {SA}, s{33+tt} offen offset:{1024*(t>>1)} {SC}"))
        return ops

    def run_op(o):
        if o[0] == "e":
            k.e(o[1])
        elif o[0] == "lg":
            k.lg(o[1], tag=o[2])
        elif o[0] == "vm":
            k.vm(o[1])
        elif o[0] == "wait":
            k.wait(lg=o[1])

    seq = [(t, kb, mt) for kb in range(18) for t in range(2) for mt in range(2)]
    seq += [(t, kb, mt) for t in range(2, 9) for kb in range(18) for mt in range(2)]
    NF = len(seq)

    def rd(F):
        t, kb, mt = seq[F]
        if F == 12:
            k.stamp()
            k.wait(vm="cs")
            for i in range(1, 18):
                k.e(f"v_add_f32 v{CSP}, v{CSP}, v{cs_regs[i]}")
            k.lg(f"ds_write_b32 v14, v{CSP}")
        elif F >= 72 and kb == 0 and mt == 0:
            issue_all(("dma", t), 5)
            k.wait(vm=("dma", t))
            k.e("s_barrier")
            if t in (2, 6):
                k.stamp()
            if t == 3:
                loadq.extend(dma_ops(4) + dma_ops(5))
            elif 4 <= t <= 6:
                loadq.extend(dma_ops(t + 2))
            elif t >= 7:
                loadq.extend(gb_dma_ops(k, t - 7, 18, 41, 1, "f2"))
        k.lg(f"ds_read_b128 {r(WF+4*(F%NB),4)}, v{4+(t&3)} offset:{(kb*2+mt)*1024}", tag=("w", F))

    for F in range(PDW):
        rd(F)
    fill = []
    LE = len(epi_ops(0))
    rate = 1.30 * LE / 72.0
    credit = 0.0
    for F in range(NF):
        t, kb, mt = seq[F]
        if F + PDW < NF:
            rd(F + PDW)
        if F < 72 and F % 4 == 0:
            issue_all(("x", kb), 2)
        k.wait(vm=("x", kb) if F < 72 else None, lg=("w", F))
        if F == 72:
            issue_all("st", 5)
            k.wait(vm="st")
            for j in range(4):
                k.e(f"v_add_f32 v{CV+j}, v{CV+4+j}, v{CV+8+j}")
            for i in range(2, 5):
                for j in range(4):
                    k.e(f"v_add_f32 v{CV+j}, v{CV+j}, v{CV+4+4*i+j}")
            for o in st_ops(1):
                o()
            loadq.extend(dma_ops(3))
        if F == 84:
            k.wait(vm="st")
            for i in range(4):
                for j in range(4):
                    k.e(f"v_add_f32 v{CV+j}, v{CV+j}, v{CV+4+4*i+j}")
            for tt in range(2):
                reduce_g(k, CV + 2 * tt, CV + 4)
                mean_rstd(k, CV + 2 * tt, NM + tt, 10 + tt, 12 + tt)
                k.e(f"""
                v_sub_f32 v{NM+tt}, 0, v{NM+tt}
                v_mul_f32 v{10+tt}, {hexf(-1.4426950408889634)}, v{10+tt}
                """)
        if F == 84:
            fill += [(0, o) for o in epi_ops(0)] + [(1, o) for o in epi_ops(1)]
        if F > 72 and kb == 0 and mt == 0:
            while fill and fill[0][0] <= t - 3:
                run_op(fill.pop(0)[1])
            fill += [(t - 1, ("nop",))] * 3 + [(t - 1, o) for o in epi_ops(t - 1)]
        for tt in range(2):
            a = r(ac(t % 3, tt, mt), 4)
            c = "0" if kb == 0 else a
            k.e(f"v_mfma_f32_16x16x32_bf16 {a}, {r(WF+4*(F%NB),4)}, {xf(tt,kb)}, {c}")
            if F >= 84:
                credit += rate * (1.25 if F < 108 else 1.0)
                while credit >= 1.0 and fill:
                    run_op(fill.pop(0)[1])
                    credit -= 1.0
                if not fill:
                    credit = 0.0
        if loadq and (F < 72 or F % 2 == 0):
            loadq.pop(0)()
    assert not loadq
    k.stamp()
    fill += [(8, o) for o in epi_ops(8)]
    while fill:
        run_op(fill.pop(0)[1])
    k.vm = _vm
    k.publish(40, slot=3)


def phase_ffn2(k, Lloop):
    k.stamp()
    gb_setup(k)
    k.e(f"""
    s_and_b32 s30, s2, 3
    s_bfe_u32 s31, s2, 0x10002
    s_lshl_b32 s31, s31, 3
    s_bfe_u32 s32, s2, 0x30003
    s_add_u32 s31, s31, s32
    s_lshr_b32 s32, s2, 6
    s_lshl_b32 s33, s32, 2
    s_add_u32 s33, s33, s30
    s_mul_i32 s33, s33, {18*18432}
    s_add_u32 s33, s33, {W2P}
    s_lshl_b32 s34, s31, 3
    s_lshl_b32 s35, s17, 1
    s_add_u32 s34, s34, s35
    s_add_u32 s36, s34, s18
    s_xor_b32 s35, s18, 1
    s_add_u32 s37, s34, s35
    s_mul_i32 s35, s30, 36
    s_mul_i32 s38, s18, 18
    s_add_u32 s35, s35, s38
    s_mul_i32 s38, s36, 144
    s_add_u32 s38, s38, s35
    s_lshl_b32 s38, s38, 10
    s_add_u32 s38, s38, {HB}
    s_mul_i32 s39, s37, 144
    s_add_u32 s39, s39, s35
    s_lshl_b32 s39, s39, 10
    s_add_u32 s39, s39, {HB}
    s_lshr_b32 s27, s31, 1
    s_lshl_b32 s27, s27, 2
    s_add_u32 s27, s27, s30
    s_lshl_b32 s27, s27, 10
    s_add_u32 s27, s27, {F_F1}
    s_lshl_b32 s28, s31, 2
    s_add_u32 s28, s28, s32
    s_lshl_b32 s28, s28, 9
    s_lshl_b32 s29, s30, 7
    s_add_u32 s29, s29, s28
    s_add_u32 s19, s29, {F_F2}
    s_add_u32 s29, s29, {CSTR + F_RED}
    s_add_u32 s28, s28, {F_F2}
    s_lshl_b32 s46, s32, 2
    s_bfe_u32 s47, s2, 0x20001
    s_add_u32 s46, s46, s47
    s_mul_i32 s46, s46, {9*18432}
    s_add_u32 s46, s46, {WQKVP}
    s_cmp_eq_u32 s{LAY}, 0
    s_cselect_b32 s46, s46, {OOB - 0x100000}
    """)
    NPRE = 4

    def pre():
        for G in range(2, NPRE):
            for o in gb_dma_ops(k, G, 18, 33, 1):
                o()
    k.await_(27, 8, pre)
    for G in range(2):
        for o in gb_act_ops(k, G, 18, 38, 39):
            o()
    extra = {7: gb_dma_ops(k, 0, 9, 46, 2, "q"), 8: gb_dma_ops(k, 1, 9, 46, 2, "q")}
    gb_main(k, 18, 33, 38, 39, False, NPRE, 1, extra)
    gb_exchange(k)
    XR = ACT
    PB = ACT + 20
    k.e(f"""
    s_lshl_b32 s40, s36, 2
    s_add_u32 s40, s40, s32
    s_mul_i32 s41, s40, 4608
    s_mul_i32 s40, s40, 5120
    s_add_u32 s40, s40, {PART}
    s_mul_i32 s42, s30, {128*4*5120}
    s_add_u32 s42, s42, s40
    s_add_u32 s43, s42, 4096
    v_lshlrev_b32 v10, 10, v3
    v_lshl_add_u32 v10, v2, 4, v10
    v_lshrrev_b32 v11, 1, v3
    v_lshlrev_b32 v11, 8, v11
    v_lshl_add_u32 v11, v2, 4, v11
    v_and_b32 v12, 1, v3
    v_lshl_add_u32 v11, v12, 3, v11
    v_add_u32 v11, 4096, v11
    v_lshlrev_b32 v12, 3, v0
    """)
    for nt in range(9):
        gb_xadd(k, nt)
    Lown, Lj, Lskip, Lfin, Lend = (k.lab(x) for x in ("own", "fj", "fskip", "ffin", "fend"))
    k.e(f"""
    s_cmp_eq_u32 s17, s30
    s_cbranch_scc1 {Lown}
    """)
    for i in range(4):
        d = WFR + 4 * i
        for c in range(4):
            k.e(f"v_cvt_pk_bf16_f32 v{d+c}, v{ACC+8*c+i}, v{ACC+8*c+4+i}")
        k.e(f"buffer_store_dwordx4 {r(d,4)}, v1, {SA}, s42 offen offset:{1024*i} {SC}")
    k.e(f"""
    v_cvt_pk_bf16_f32 v{WFR+16}, v{ACC+32}, v{ACC+33}
    v_cvt_pk_bf16_f32 v{WFR+17}, v{ACC+34}, v{ACC+35}
    buffer_store_dwordx2 {r(WFR+16,2)}, v12, {SA}, s43 offen {SC}
    s_branch {Lj}
    """)
    k.label(Lown)
    k.e(f"s_add_u32 s44, s41, {XB}")
    for i in range(4):
        k.e(f"buffer_load_dwordx4 {r(XR+4*i,4)}, v10, {SA}, s44 offen offset:{256*i} {SC}")
    k.e(f"buffer_load_dwordx2 {r(XR+16,2)}, v11, {SA}, s44 offen {SC}")
    k.label(Lj)
    k.publish(19)
    k.await_(28, 4)
    k.e(f"""
    s_cmp_lg_u32 s17, s30
    s_cbranch_scc1 {Lskip}
    """)
    for p in range(3):
        k.e(f"""
        s_add_u32 s44, s30, {p+1}
        s_and_b32 s44, s44, 3
        s_mul_i32 s44, s44, {128*4*5120}
        s_add_u32 s44, s44, s40
        s_add_u32 s45, s44, 4096
        """)
        for i in range(4):
            k.vm(f"buffer_load_dwordx4 {r(PB+18*p+4*i,4)}, v1, {SA}, s44 offen offset:{1024*i} {SC}", tag=("pp", p))
        k.vm(f"buffer_load_dwordx2 {r(PB+18*p+16,2)}, v12, {SA}, s45 offen {SC}", tag=("pp", p))
    T = WFR + 18
    for p in range(3):
        k.wait(vm=("pp", p))
        for i in range(4):
            for c in range(4):
                s = PB + 18 * p + 4 * i + c
                k.e(f"""
                v_lshlrev_b32 v{T}, 16, v{s}
                v_and_b32 v{s}, 0xffff0000, v{s}
                v_add_f32 v{ACC+8*c+i}, v{ACC+8*c+i}, v{T}
                v_add_f32 v{ACC+8*c+4+i}, v{ACC+8*c+4+i}, v{s}
                """)
        for c in range(2):
            s = PB + 18 * p + 16 + c
            k.e(f"""
            v_lshlrev_b32 v{T}, 16, v{s}
            v_and_b32 v{s}, 0xffff0000, v{s}
            v_add_f32 v{ACC+32+2*c}, v{ACC+32+2*c}, v{T}
            v_add_f32 v{ACC+33+2*c}, v{ACC+33+2*c}, v{s}
            """)
    for i in range(4):
        for hh in range(2):
            a = [ACC + 4 * (4 * hh + c) + i for c in range(4)]
            resid_round(k, a, XR + 4 * i + 2 * hh, WFR + 4 * i + 2 * hh, T)
    resid_round(k, [ACC + 32 + c for c in range(4)], XR + 16, WFR + 16, T)
    k.e(f"""
    s_cmp_lg_u32 s{LAY}, 0
    s_cbranch_scc1 {Lfin}
    s_add_u32 s44, s41, {LSTR + XA}
    v_mov_b32 v14, 0x3f803f80
    v_mov_b32 v8, 0
    v_mov_b32 v9, 0
    """)
    for i in range(4):
        k.e(f"buffer_store_dwordx4 {r(WFR+4*i,4)}, v10, {SA}, s44 offen offset:{256*i} {SC}")
    k.e(f"buffer_store_dwordx2 {r(WFR+16,2)}, v11, {SA}, s44 offen {SC}")
    for d in range(18):
        k.e(f"v_dot2c_f32_bf16 v8, v{WFR+d}, v14")
        k.e(f"v_dot2c_f32_bf16 v9, v{WFR+d}, v{WFR+d}")
    k.e(f"""
    s_lshl_b32 s44, s36, 9
    s_lshl_b32 s45, s32, 7
    s_add_u32 s44, s44, s45
    s_add_u32 s44, s44, {LSTR + STA}
    """)
    reduce_g(k, 8, 10)
    k.e(f"""
    s_mov_b64 exec, 0xffff
    buffer_store_dwordx2 v[8:9], v12, {SA}, s44 offen {SC}
    s_mov_b64 exec, -1
    """)
    k.label(Lskip)
    k.vmq, k.lgq = [], []
    k.e(f"""
    s_cmp_lg_u32 s{LAY}, 0
    s_cbranch_scc1 {Lend}
    """)
    nst0 = getattr(k, "nst", 0)
    k.publish(29, slot=4)
    k.e(f"""
    s_mov_b32 s{LAY}, {CSTR}
    s_branch {Lloop}
    """)
    k.label(Lfin)
    k.e(f"""
    s_mov_b32 s44, s6
    s_mov_b32 s45, s7
    s_mov_b32 s46, {2048*576*2}
    s_mov_b32 s47, 0x20000
    s_mul_i32 s40, s36, {16*1152}
    s_mul_i32 s41, s32, 288
    s_add_u32 s40, s40, s41
    v_mul_u32_u24 v10, 1152, v2
    v_lshl_add_u32 v11, v3, 3, v10
    v_lshl_add_u32 v10, v3, 6, v10
    """)
    for i in range(4):
        k.e(f"buffer_store_dwordx4 {r(WFR+4*i,4)}, v10, s[44:47], s40 offen offset:{16*i}")
    k.e(f"buffer_store_dwordx2 {r(WFR+16,2)}, v11, s[44:47], s40 offen offset:256")
    k.label(Lend)
    if Kern.STAMPS:
        k.nst = nst0
        k.stamp()
        k.wait_all()
        k.stamp()
        k.dump(4)


def gen_mega(name="mega_kernel"):
    k = Mega(name, vgpr=256, sgpr=102 if Kern.STAMPS else 80)
    Kern.STAMP_S = 80
    Lexit, Lloop = k.lab("exit"), k.lab("loop")
    k.e(f"""
    s_cmp_ge_u32 s2, 256
    s_cbranch_scc1 {Lexit}
    s_load_dwordx2 s[4:5], s[0:1], 72
    s_load_dwordx2 s[6:7], s[0:1], 56
    s_load_dwordx4 s[{PS+20}:{PS+23}], s[0:1], 24
    s_load_dwordx4 s[{PS+24}:{PS+27}], s[0:1], 40
    v_lshrrev_b32 v1, 6, v0
    s_mov_b32 s{LAY}, 0
    v_readfirstlane_b32 s16, v1
    s_waitcnt lgkmcnt(0)
    s_mov_b32 s8, s4
    s_mov_b32 s9, s5
    s_mov_b32 s10, {WS_USED + (0x400000 if Kern.STAMPS else 0)}
    s_mov_b32 s11, 0x20000
    s_add_u32 s12, s4, {ABASE}
    s_addc_u32 s13, s5, 0
    s_mov_b32 s14, {ASIZE}
    s_mov_b32 s15, 0x20000
    """)
    gb_setup(k)
    k.e(f"""
    s_lshr_b32 s46, s2, 6
    s_lshl_b32 s46, s46, 2
    s_bfe_u32 s47, s2, 0x20001
    s_add_u32 s46, s46, s47
    s_mul_i32 s46, s46, {9*18432}
    s_add_u32 s46, s46, {WQKVP}
    """)
    for G in range(2):
        for o in gb_dma_ops(k, G, 9, 46, 2):
            o()
    k.label(Lloop)
    phase_qkv(k)
    k.nst = 0
    phase_attn(k)
    phase_wo(k)
    phase_ffn1(k)
    phase_ffn2(k, Lloop)
    k.label(Lexit)
    k.e("s_endpgm")
    return k
```

```python
from asmlib import *
from layout import *

N_W13 = 648
N_W2 = 576
N_W2T = 72
N_QKV = 252
N_WO = 90
N_X = 128
T_QKV = 0
T_X = T_QKV + N_QKV
T_WO = T_X + N_X
T_W2T = T_WO + N_WO
T_Z = T_W2T + N_W2T
T_END = T_Z + 16
PREP_WGS = (T_END + 3) // 4
A_W1 = 0
A_W3 = N_W13
A_W2 = 2 * N_W13
A_END = A_W2 + N_W2


def ws_srd(k, sptr=4, srd=8):
    k.e(f"""
    s_mov_b32 s{srd}, s{sptr}
    s_mov_b32 s{srd+1}, s{sptr+1}
    s_mov_b32 s{srd+2}, {WS_USED}
    s_mov_b32 s{srd+3}, 0x20000
    """)


def sdiv(k, q, r, x, d, tmp):
    magic = (2 ** 32 + d - 1) // d
    k.e(f"""
    s_mul_hi_u32 s{q}, s{x}, {magic}
    s_mul_i32 s{tmp}, s{q}, {d}
    s_sub_u32 s{r}, s{x}, s{tmp}
    """)


CGS = 4 * 18 * 2 * 9 * 1024


def w2_rows(k, skb, SO, T, vsrc, vg, vt):
    sdiv(k, T + 3, T + 4, skb, 18, T + 5)
    k.e(f"""
    s_mul_i32 s{T+5}, s{T+4}, 22
    s_lshr_b32 s{T+5}, s{T+5}, 6
    s_mul_i32 s{T+5}, s{T+5}, 3
    s_lshl_b32 s{T}, s{T+4}, 1
    s_add_u32 s{T+5}, s{T+5}, s{T}
    s_mul_i32 s{T}, s{T+4}, 9
    s_sub_u32 s{T}, s{T}, 102
    s_cmp_ge_u32 s{T+4}, 12
    s_cselect_b32 s{T+5}, s{T}, s{T+5}
    s_mul_i32 s{T}, s{T+4}, 18
    s_sub_u32 s{T}, s{T}, 280
    s_cmp_ge_u32 s{T+4}, 16
    s_cselect_b32 s{T+5}, s{T}, s{T+5}
    s_cselect_b32 s{T}, 9, 1
    s_cselect_b32 s{T+4}, 8, 0
    s_mul_i32 s{T+3}, s{T+3}, 36
    s_add_u32 s{T+5}, s{T+5}, s{T+3}
    s_add_u32 s{T}, s{T}, s{T+5}
    """)
    for e, tau in ((0, T + 5), (1, T)):
        k.e(f"""
        s_lshr_b32 s{T+3}, s{tau}, 3
        s_lshl_b32 s{T+3}, s{T+3}, 7
        s_and_b32 s{SO+1}, s{tau}, 7
        s_add_u32 s{T+3}, s{T+3}, s{SO+1}
        s_mul_i32 s{SO+4*e}, s{T+3}, 1152
        """)
    k.e(f"""
    s_sub_u32 s{T+5}, s{SO+4}, s{SO}
    s_add_u32 s{T+3}, s{SO}, {32*1152}
    s_cmp_eq_u32 s{T+4}, 8
    s_cselect_b32 s{T+5}, s{T+5}, {64*1152}
    s_cselect_b32 s{SO+4}, s{T+3}, s{SO+4}
    s_cselect_b32 s{T}, 2, 1
    s_mul_i32 s{T}, s{T}, {32*1152}
    v_lshrrev_b32 v{vt}, 1, v{vg}
    v_mul_lo_u32 v{vsrc}, v{vt}, s{T+5}
    v_and_b32 v{vt}, 1, v{vg}
    v_mul_lo_u32 v{vt}, v{vt}, s{T}
    v_add_u32 v{vsrc}, v{vsrc}, v{vt}
    """)
    for e in range(2):
        for j in range(1, 4):
            k.e(f"s_add_u32 s{SO+4*e+j}, s{SO+4*e}, {8*j*1152}")
    sdiv(k, T + 3, T + 4, skb, 36, T + 5)
    k.e(f"""
    s_mul_i32 s{T+3}, s{T+3}, 36
    s_cmp_ge_u32 s{T+4}, 18
    s_cselect_b32 s{T+5}, 35, 0
    s_lshl_b32 s{T+4}, s{T+4}, 1
    s_sub_u32 s{T+4}, s{T+4}, s{T+5}
    s_add_u32 s{T+3}, s{T+3}, s{T+4}
    s_mul_i32 s{T+3}, s{T+3}, 9216
    """)


def ffn_task_setup(k, P, sT, S, V, vlane):
    T = S + 16
    o, g, t0, t1 = V + 4, V + 5, V + 6, V + 7
    k.e(f"""
    v_and_b32 v{o}, 15, v{vlane}
    v_lshrrev_b32 v{g}, 4, v{vlane}
    s_mov_b32 s{S+2}, {4608*576*2}
    s_mov_b32 s{S+3}, 0x20000
    s_cmp_lt_u32 s{sT}, {A_W2}
    s_cbranch_scc1 {P}w13
    s_sub_u32 s{T}, s{sT}, {A_W2}
    s_min_u32 s{T}, s{T}, {N_W2-1}
    s_mov_b32 s{S}, s{S+26}
    s_mov_b32 s{S+1}, s{S+27}
    s_lshr_b32 s{T+1}, s{T}, 2
    s_and_b32 s{T+2}, s{T}, 3
    """)
    w2_rows(k, T + 1, S + 4, T, V, g, t0)
    k.e(f"""
    s_add_u32 s{T+3}, s{T+3}, {W2P}
    v_mov_b32 v{V+3}, {OOB}
    s_mul_i32 s{T+4}, s{T+2}, 288
    v_lshl_add_u32 v{V}, v{o}, 4, v{V}
    v_add_u32 v{V}, s{T+4}, v{V}
    s_mul_i32 s{T+4}, s{T+2}, {CGS}
    s_add_u32 s{T+3}, s{T+3}, s{T+4}
    s_cmp_lt_u32 s{sT}, {A_END}
    s_cselect_b32 s{T+3}, s{T+3}, {OOB - 8192}
    v_and_b32 v{t0}, 3, v{o}
    v_lshrrev_b32 v{t1}, 2, v{o}
    v_lshl_add_u32 v{t0}, v{t0}, 2, v{t1}
    v_lshl_add_u32 v{t0}, v{g}, 4, v{t0}
    v_lshl_add_u32 v{V+1}, v{t0}, 4, s{T+3}
    v_add_u32 v{V+2}, 4096, v{V+1}
    """)
    for c in range(4):
        k.e(f"s_mov_b32 s{S+12+c}, {1024*c}")
    k.e(f"s_branch {P}done")
    k.label(P + "w13")
    k.e(f"""
    s_cmp_lt_u32 s{sT}, {A_W3}
    s_cselect_b32 s{S}, s{S+22}, s{S+24}
    s_cselect_b32 s{S+1}, s{S+23}, s{S+25}
    s_cselect_b32 s{T+5}, 0, 1
    s_cselect_b32 s{T}, 0, {N_W13}
    s_sub_u32 s{T}, s{sT}, s{T}
    """)
    sdiv(k, T + 1, T + 2, T, 36, T + 3)
    for j in range(8):
        k.e(f"s_mov_b32 s{S+4+j}, {j*9216}")
    for c in range(4):
        k.e(f"s_mov_b32 s{S+12+c}, {36864*c}")
    k.e(f"""
    s_lshl_b32 s{T+3}, s{T+1}, 5
    v_lshl_add_u32 v{V}, v{g}, 3, s{T+3}
    v_mul_u32_u24 v{V}, 9216, v{V}
    s_lshl_b32 s{T+3}, s{T+2}, 8
    v_lshl_add_u32 v{t0}, v{o}, 4, s{T+3}
    v_add_u32 v{V}, v{V}, v{t0}
    s_mul_i32 s{T+3}, s{T+2}, {8*18}
    s_add_u32 s{T+3}, s{T+3}, s{T+1}
    s_lshl_b32 s{T+3}, s{T+3}, 1
    s_add_u32 s{T+3}, s{T+3}, s{T+5}
    s_lshl_b32 s{T+3}, s{T+3}, 10
    s_add_u32 s{T+3}, s{T+3}, {W13P}
    v_lshl_add_u32 v{V+1}, v{vlane}, 4, s{T+3}
    v_add_u32 v{V+2}, {4*36864}, v{V+1}
    s_mul_i32 s{T+3}, s{T+1}, 288
    s_lshl_b32 s{T+4}, s{T+2}, 3
    s_add_u32 s{T+3}, s{T+3}, s{T+4}
    s_lshl_b32 s{T+3}, s{T+3}, 1
    s_add_u32 s{T+3}, s{T+3}, s{T+5}
    s_lshl_b32 s{T+3}, s{T+3}, 6
    s_add_u32 s{T+3}, s{T+3}, {CS13}
    v_lshl_add_u32 v{V+3}, v{o}, 2, s{T+3}
    v_mov_b32 v{t0}, {OOB}
    v_cmp_gt_u32 vcc, 16, v{vlane}
    s_nop 1
    v_cndmask_b32 v{V+3}, v{t0}, v{V+3}, vcc
    """)
    k.label(P + "done")


def gen_prep():
    k = Kern("prep_kernel", vgpr=128, sgpr=64)
    P = "Lp_"
    k.e(f"""
    s_load_dwordx8 s[40:47], s[0:1], 0
    s_load_dwordx2 s[48:49], s[0:1], 48
    s_load_dwordx2 s[4:5], s[0:1], 72
    v_lshrrev_b32 v1, 6, v0
    v_and_b32 v0, 63, v0
    v_readfirstlane_b32 s16, v1
    s_lshl_b32 s17, s2, 2
    s_add_u32 s16, s16, s17
    v_and_b32 v2, 15, v0
    v_lshrrev_b32 v3, 4, v0
    v_lshlrev_b32 v4, 4, v0
    v_mov_b32 v28, 0x3f803f80
    v_mov_b32 v29, 0x3f803f80
    v_mov_b32 v30, 0x3f803f80
    v_mov_b32 v31, 0x3f803f80
    s_mov_b32 s36, 0x05040100
    s_mov_b32 s37, 0x07060302
    s_mov_b32 s15, 0x20000
    s_waitcnt lgkmcnt(0)
    """)
    ws_srd(k)

    def loads():
        for j in range(8):
            k.e(f"buffer_load_dwordx4 v[{32+4*j}:{35+4*j}], v10, s[12:15], s{20+j} offen")

    k.e(f"""
    s_cmp_ge_u32 s16, {T_END}
    s_cbranch_scc1 {P}end
    s_cmp_lt_u32 s16, {T_X}
    s_cbranch_scc1 {P}qkv
    s_cmp_lt_u32 s16, {T_WO}
    s_cbranch_scc1 {P}x
    s_cmp_ge_u32 s16, {T_Z}
    s_cbranch_scc1 {P}z
    s_cmp_lt_u32 s16, {T_W2T}
    s_cbranch_scc1 {P}wo
    """)
    k.e(f"""
    s_sub_u32 s17, s16, {T_W2T}
    s_mov_b32 s12, s48
    s_mov_b32 s13, s49
    s_mov_b32 s14, {4608*576*2}
    """)
    w2_rows(k, 17, 20, 28, 10, 3, 5)
    k.e(f"""
    v_bfe_u32 v5, v2, 1, 2
    v_mul_u32_u24 v6, 288, v5
    v_add_u32 v10, v10, v6
    v_mul_u32_u24 v12, {CGS}, v5
    v_and_b32 v5, 1, v2
    v_lshl_add_u32 v10, v5, 4, v10
    v_add_u32 v10, 256, v10
    v_lshl_add_u32 v12, v5, 7, v12
    v_lshl_add_u32 v12, v3, 8, v12
    v_lshrrev_b32 v5, 3, v2
    v_mul_u32_u24 v6, {2304*1152}, v5
    v_add_u32 v10, v10, v6
    """)
    loads()
    k.e(f"""
    v_mul_u32_u24 v6, {2*18*2*9216}, v5
    v_add_u32 v12, v12, v6
    s_add_u32 s31, s31, {W2P + 8192}
    v_add_u32 v12, s31, v12
    v_mov_b32 v9, {OOB}
    s_branch {P}dst16
    """)
    k.label(P + "wo")
    k.e(f"s_sub_u32 s16, s16, {T_WO}")
    sdiv(k, 17, 18, 16, 5, 19)
    k.e(f"""
    s_mov_b32 s12, s44
    s_mov_b32 s13, s45
    s_mov_b32 s14, {576*576*2}
    s_lshl_b32 s30, s18, 3
    v_lshrrev_b32 v5, 1, v2
    v_add_u32 v5, s30, v5
    v_and_b32 v6, 1, v2
    v_lshlrev_b32 v6, 7, v6
    v_lshl_add_u32 v6, v3, 8, v6
    s_lshl_b32 s30, s18, 8
    v_lshlrev_b32 v7, 4, v2
    v_add_u32 v7, s30, v7
    s_cmp_ge_u32 s17, 16
    s_cbranch_scc1 {P}wo_tail
    """)
    for j in range(8):
        k.e(f"s_mov_b32 s{20+j}, {j*1152}")
    k.e(f"""
    s_mul_i32 s30, s17, 36
    v_lshrrev_b32 v10, 1, v3
    v_mul_u32_u24 v10, 18, v10
    v_and_b32 v9, 1, v3
    v_lshl_add_u32 v10, v9, 3, v10
    v_add_u32 v10, s30, v10
    s_branch {P}wo_join
    """)
    k.label(P + "wo_tail")
    for j in range(8):
        k.e(f"s_mov_b32 s{20+j}, {(18*(j>>1) + (j&1))*1152}")
    k.e(f"""
    s_sub_u32 s30, s17, 16
    s_mul_i32 s30, s30, 288
    s_add_u32 s30, s30, 16
    v_mul_u32_u24 v10, 72, v3
    v_add_u32 v10, s30, v10
    """)
    k.label(P + "wo_join")
    k.e(f"""
    v_mul_u32_u24 v10, 1152, v10
    v_add_u32 v10, v10, v7
    """)
    loads()
    k.e(f"""
    v_mul_u32_u24 v8, 18, v5
    v_add_u32 v8, s17, v8
    v_lshl_add_u32 v8, v8, 10, v6
    v_add_u32 v8, {WOP}, v8
    v_cmp_gt_u32 vcc, 36, v5
    v_mov_b32 v9, {OOB}
    v_cndmask_b32 v12, v9, v8, vcc
    """)
    k.label(P + "dst16")
    for c in range(1, 8):
        k.e(f"v_add_u32 v{12+c}, {16*c}, v12")
    for c in range(8):
        k.e(f"v_mov_b32 v{20+c}, v9")
    k.e(f"s_branch {P}core")

    k.label(P + "qkv")
    sdiv(k, 17, 18, 16, 14, 19)
    k.e(f"""
    s_mov_b32 s12, s42
    s_mov_b32 s13, s43
    s_mov_b32 s14, {576*1728*2}
    """)
    for j in range(8):
        k.e(f"s_mov_b32 s{20+j}, {j*3456}")
    k.e(f"""
    s_lshl_b32 s30, s17, 5
    v_lshl_add_u32 v10, v3, 3, s30
    v_mul_u32_u24 v10, 3456, v10
    s_lshl_b32 s30, s18, 8
    v_lshl_add_u32 v9, v2, 4, s30
    v_add_u32 v10, v10, v9
    """)
    loads()
    sdiv(k, 32, 33, 17, 9, 19)
    k.e(f"""
    s_lshl_b32 s30, s33, 1
    s_add_u32 s30, s30, s32
    s_mul_i32 s30, s30, 9216
    s_add_u32 s30, s30, {WQKVP}
    v_lshl_add_u32 v11, v3, 8, s30
    s_mul_i32 s31, s17, {12*144*4}
    s_add_u32 s31, s31, {CSQ}
    s_lshl_b32 s35, s18, 7
    v_lshl_add_u32 v5, v2, 3, s35
    v_mov_b32 v72, {OOB}
    v_cmp_gt_u32 s[56:57], 16, v0
    """)
    for c in range(8):
        k.e(f"""
        v_add_u32 v6, {c}, v5
        v_mul_u32_u24 v7, 3641, v6
        v_lshrrev_b32 v7, 16, v7
        v_mul_u32_u24 v8, 18, v7
        v_sub_u32 v8, v6, v8
        v_and_b32 v9, 7, v7
        v_lshrrev_b32 v7, 3, v7
        v_lshrrev_b32 v64, 3, v8
        v_lshlrev_b32 v64, 2, v64
        v_and_or_b32 v64, v8, 3, v64
        v_bfe_u32 v65, v8, 2, 1
        v_and_b32 v66, 6, v9
        v_add_u32 v66, v66, v65
        v_lshlrev_b32 v66, 4, v66
        v_and_b32 v67, 1, v9
        v_lshl_add_u32 v66, v67, 3, v66
        v_lshlrev_b32 v67, 4, v9
        v_lshl_add_u32 v67, v65, 3, v67
        v_cmp_gt_u32 vcc, 8, v7
        v_lshl_add_u32 v68, v9, 1, v8
        v_add_u32 v68, 112, v68
        v_cndmask_b32 v66, v67, v66, vcc
        v_add_u32 v66, v66, v64
        v_cmp_gt_u32 vcc, 16, v8
        v_mul_u32_u24 v69, {9*2*9}, v7
        v_mul_u32_u24 v70, 144, v7
        v_cndmask_b32 v66, v68, v66, vcc
        v_lshrrev_b32 v67, 4, v66
        v_add_u32 v69, v69, v67
        v_and_b32 v67, 15, v66
        v_lshlrev_b32 v67, 4, v67
        v_lshl_add_u32 v69, v69, 10, v67
        v_add_u32 v69, v69, v11
        v_cmp_gt_u32 vcc, 1728, v6
        v_add_u32 v70, v70, v66
        v_lshl_add_u32 v70, v70, 2, s31
        v_cndmask_b32 v{12+c}, v72, v69, vcc
        s_and_b64 vcc, vcc, s[56:57]
        s_nop 1
        v_cndmask_b32 v{20+c}, v72, v70, vcc
        """)

    k.label(P + "core")
    k.wait_all(lg=False)
    for c in range(8):
        for jp in range(4):
            k.e(f"v_perm_b32 v{64+4*c+jp}, v{32+4*(2*jp+1)+(c>>1)}, v{32+4*(2*jp)+(c>>1)}, s{36+(c&1)}")
        k.e(f"buffer_store_dwordx4 v[{64+4*c}:{67+4*c}], v{12+c}, s[8:11], 0 offen")
    for c in range(8):
        k.e(f"v_mfma_f32_16x16x32_bf16 v[{96+4*c}:{99+4*c}], v[28:31], v[{64+4*c}:{67+4*c}], 0")
    for c in range(8):
        k.e(f"buffer_store_dword v{96+4*c}, v{20+c}, s[8:11], 0 offen")
    k.e(f"s_endpgm")

    k.label(P + "x")
    k.e(f"""
    s_sub_u32 s16, s16, {T_X}
    s_mov_b32 s12, s40
    s_mov_b32 s13, s41
    s_mov_b32 s14, {2048*576*2}
    s_lshl_b32 s30, s16, 4
    v_add_u32 v5, s30, v2
    v_mul_u32_u24 v10, 1152, v5
    v_lshl_add_u32 v10, v3, 4, v10
    s_mul_i32 s30, s16, {18*1024}
    s_add_u32 s30, s30, {ABASE + XA}
    v_add_u32 v11, s30, v4
    v_mov_b32 v12, 0
    v_mov_b32 v13, 0
    s_lshl_b32 s31, s16, 9
    s_add_u32 s31, s31, {ABASE + STA}
    v_lshlrev_b32 v14, 3, v0
    """)
    for kb in range(18):
        k.vm(f"buffer_load_dwordx4 v[{32+4*kb}:{35+4*kb}], v10, s[12:15], 0 offen offset:{64*kb}", tag=("x", kb))
    for kb in range(18):
        k.wait(vm=("x", kb))
        if kb % 4 == 0 and kb:
            k.e(f"v_add_u32 v11, 4096, v11")
        k.vm(f"buffer_store_dwordx4 v[{32+4*kb}:{35+4*kb}], v11, s[8:11], 0 offen offset:{1024*(kb%4)}")
        for d in range(4):
            k.e(f"v_dot2c_f32_bf16 v12, v{32+4*kb+d}, v28")
            k.e(f"v_dot2c_f32_bf16 v13, v{32+4*kb+d}, v{32+4*kb+d}")
    k.e(f"""
    s_nop 2
    buffer_store_dwordx2 v[12:13], v14, s[8:11], s31 offen
    s_endpgm
    """)
    k.label(P + "z")
    k.e(f"""
    s_sub_u32 s16, s16, {T_Z}
    s_lshl_b32 s30, s16, 15
    s_add_u32 s30, s30, {ABASE + CNT}
    v_lshlrev_b32 v5, 7, v0
    v_mov_b32 v6, 0
    """)
    for i in range(4):
        k.e(f"buffer_store_dword v6, v5, s[8:11], s30 offen")
        k.e(f"s_add_u32 s30, s30, 8192")
    k.label(P + "end")
    k.e("s_endpgm")
    return k
```

```python
WQKVP = 0x0000000
WOP   = 0x0200000
W13P  = 0x0300000
W2P   = 0x0E00000
CSQ   = 0x1340000
CS13  = 0x1360000
W_END = 0x1420000
ABASE = 0x1500000
CNT   = 0x2A80000
XA    = 0x0010000
XB    = 0x0250000
STA_OLD   = 0x0490000
STB   = 0x04A0000
QF    = 0x0540000
KF    = 0x0740000
QL    = 0x0940000
KL    = 0x0980000
VF    = 0x09C0000
VT    = 0x0BC0000
OB    = 0x0C00000
HB    = 0x0E40000
OL    = 0x2A40000
STA   = 0x2B00000
PART  = 0x2040000
PART_OLD  = 0x2040000
LSTR  = 0
CSTR  = 0x40000
ASIZE = 0x2B40000
WS_USED = ABASE + ASIZE
WS_SIZE = 268435456
OOB = 0x7FFFFF00
F_QKV = CNT + 0 * 32768
F_ATT = CNT + 1 * 32768
F_WO  = CNT + 2 * 32768
F_F1  = CNT + 3 * 32768
F_F2  = CNT + 4 * 32768
F_RED = CNT + 5 * 32768
F_P0  = CNT + 6 * 32768
F_F1E = CNT + 7 * 32768
```

```python
import os, struct
from asmlib import *
from layout import *
from k_prep import ws_srd, ffn_task_setup, w2_rows, sdiv, CGS

SW = "s[8:11]"
SA = "s[12:15]"
LAY = 79
NON = 80
PS = 48
LDS_BYTES = 4 * 36864 + 2048
SC = "sc1"
SLEEP = int(os.environ.get("SLEEP", "2"))


def hexf(x):
    return "0x%08x" % struct.unpack("<I", struct.pack("<f", x))[0]


def r(b, n):
    return f"v[{b}:{b+n-1}]"


class Mega(Kern):
    uid = 0

    def lab(self, s):
        Mega.uid += 1
        return f"Lm{Mega.uid}_{s}"

    def lane_setup(self, half32=False):
        self.e(f"""
        v_mbcnt_lo_u32_b32 v0, -1, 0
        v_mbcnt_hi_u32_b32 v0, -1, v0
        v_lshlrev_b32 v1, 4, v0
        v_and_b32 v2, {31 if half32 else 15}, v0
        v_lshrrev_b32 v3, {5 if half32 else 4}, v0
        """)

    def dump(self, slot):
        if not Kern.STAMPS:
            return
        n = getattr(self, "nst", 0)
        self.e(f"""
        s_waitcnt lgkmcnt(0)
        s_lshl_b32 s100, s2, 3
        s_add_u32 s100, s100, s16
        s_lshl_b32 s100, s100, 6
        s_lshl_b32 s101, s{LAY}, 2
        s_add_u32 s100, s100, s101
        s_add_u32 s100, s100, {WS_USED + slot * 131072}
        s_mov_b64 exec, 1
        v_mov_b32 v13, 0
        """)
        for i in range(n):
            self.e(f"v_mov_b32 v14, s{Kern.STAMP_S + 2*i}")
            self.vm(f"buffer_store_dword v14, v13, {SW}, s100 offen offset:{4*i}")
        self.e(f"v_mov_b32 v14, s81")
        self.vm(f"buffer_store_dword v14, v13, {SW}, s100 offen offset:60")
        self.e("s_mov_b64 exec, -1")
        self.nst = 0

    def publish(self, ssig, slot=None):
        self.stamp()
        self.wait_all()
        self.stamp()
        L = self.lab("pub")
        self.e(f"""
        s_barrier
        s_cmp_lg_u32 s16, 0
        s_cbranch_scc1 {L}
        v_mov_b32 v13, s{LAY}
        v_mov_b32 v14, s{NON}
        s_mov_b64 exec, 1
        buffer_store_dword v14, v13, {SA}, s{ssig} offen sc1
        s_mov_b64 exec, -1
        """)
        self.label(L)
        if slot is not None:
            self.dump(slot)

    def wpublish(self, ssig, slot=None):
        self.stamp()
        self.e(f"""
        v_mov_b32 v13, s{LAY}
        v_mov_b32 v14, s{NON}
        """)
        self.wait_all()
        self.e(f"""
        s_mov_b64 exec, 1
        buffer_store_dword v14, v13, {SA}, s{ssig} offen sc1
        s_mov_b64 exec, -1
        """)
        self.stamp()
        if slot is not None:
            self.dump(slot)

    def wawait(self, swait, n, l0=None):
        Ll, Ld = self.lab("l"), self.lab("d")
        mask = (1 << n) - 1
        self.e(f"""
        v_lshl_add_u32 v13, v0, 7, s{LAY}
        s_mov_b32 s3, 0x40000
        s_mov_b32 exec_lo, {mask & 0xffffffff}
        s_mov_b32 exec_hi, {mask >> 32}
        """)
        if l0 is not None:
            self.e(f"""
            s_cmp_lg_u32 s{LAY}, 0
            s_cbranch_scc1 {Ll}
            s_mov_b64 exec, -1
            """)
            l0()
        self.label(Ll)
        self.e(f"""
        buffer_load_dword v14, v13, {SA}, s{swait} offen sc1
        s_waitcnt vmcnt(0)
        v_cmp_ne_u32 vcc, s{NON}, v14
        s_sub_u32 s3, s3, 1
        s_cbranch_scc1 {Ld}
        s_nop 2
        s_cbranch_vccz {Ld}
        s_sleep {SLEEP}
        s_branch {Ll}
        """)
        self.label(Ld)
        self.e("s_mov_b64 exec, -1")
        self.vmq = []
        self.stamp()

    def poll_all(self, base):
        La, Ld = self.lab("a"), self.lab("d")
        self.e(f"""
        v_lshlrev_b32 v13, 7, v0
        s_mov_b32 s3, 0x40000
        s_mov_b32 s26, {base}
        """)
        self.label(La)
        self.e(f"""
        buffer_load_dword v14, v13, {SA}, s26 offen sc1
        v_add_u32 v15, 8192, v13
        buffer_load_dword v10, v15, {SA}, s26 offen sc1
        v_add_u32 v15, 16384, v13
        buffer_load_dword v11, v15, {SA}, s26 offen sc1
        v_add_u32 v15, 24576, v13
        buffer_load_dword v12, v15, {SA}, s26 offen sc1
        s_waitcnt vmcnt(0)
        v_xor_b32 v14, s{NON}, v14
        v_xor_b32 v10, s{NON}, v10
        v_xor_b32 v11, s{NON}, v11
        v_xor_b32 v12, s{NON}, v12
        v_or3_b32 v14, v14, v10, v11
        v_or_b32 v14, v14, v12
        v_cmp_ne_u32 vcc, 0, v14
        s_sub_u32 s3, s3, 1
        s_cbranch_scc1 {Ld}
        s_nop 2
        s_cbranch_vccz {Ld}
        s_sleep {SLEEP}
        s_branch {La}
        """)
        self.label(Ld)

    def await_(self, swait, n, pre=None, l0=None, all_layer0=None):
        Lp, Lj, Ll, Ld = self.lab("p"), self.lab("j"), self.lab("l"), self.lab("d")
        q0 = list(self.vmq)
        self.e(f"""
        s_cmp_eq_u32 s16, 0
        s_cbranch_scc1 {Lp}
        """)
        if pre:
            pre()
        q1 = list(self.vmq)
        self.e(f"""
        s_barrier
        s_branch {Lj}
        """)
        self.label(Lp)
        mask = (1 << n) - 1
        self.e(f"""
        v_lshl_add_u32 v13, v0, 7, s{LAY}
        s_mov_b32 s3, 0x40000
        """)
        if all_layer0 is not None:
            La, Lb = self.lab("a"), self.lab("b")
            self.e(f"""
            s_cmp_lg_u32 s{LAY}, 0
            s_cbranch_scc1 {Lb}
            s_mov_b32 s{swait}, {all_layer0}
            """)
            self.label(La)
            self.e(f"""
            buffer_load_dword v14, v13, {SA}, s{swait} offen sc1
            v_add_u32 v15, 8192, v13
            buffer_load_dword v10, v15, {SA}, s{swait} offen sc1
            v_add_u32 v15, 16384, v13
            buffer_load_dword v11, v15, {SA}, s{swait} offen sc1
            v_add_u32 v15, 24576, v13
            buffer_load_dword v12, v15, {SA}, s{swait} offen sc1
            s_waitcnt vmcnt(0)
            v_xor_b32 v14, s{NON}, v14
            v_xor_b32 v10, s{NON}, v10
            v_xor_b32 v11, s{NON}, v11
            v_xor_b32 v12, s{NON}, v12
            v_or3_b32 v14, v14, v10, v11
            v_or_b32 v14, v14, v12
            v_cmp_ne_u32 vcc, 0, v14
            s_sub_u32 s3, s3, 1
            s_cbranch_scc1 {Ld}
            s_nop 2
            s_cbranch_vccz {Ld}
            s_sleep {SLEEP}
            s_branch {La}
            """)
            self.label(Lb)
        self.e(f"""
        s_mov_b32 exec_lo, {mask & 0xffffffff}
        s_mov_b32 exec_hi, {mask >> 32}
        """)
        if l0 is not None:
            self.e(f"""
            s_cmp_lg_u32 s{LAY}, 0
            s_cbranch_scc1 {Ll}
            s_mov_b64 exec, -1
            """)
            l0()
        self.label(Ll)
        self.e(f"""
        buffer_load_dword v14, v13, {SA}, s{swait} offen sc1
        s_waitcnt vmcnt(0)
        v_cmp_ne_u32 vcc, s{NON}, v14
        s_sub_u32 s3, s3, 1
        s_cbranch_scc1 {Ld}
        s_nop 2
        s_cbranch_vccz {Ld}
        s_sleep {SLEEP}
        s_branch {Ll}
        """)
        self.label(Ld)
        self.e(f"""
        s_mov_b64 exec, -1
        s_barrier
        """)
        self.vmq = q0
        if pre:
            pre()
        assert self.vmq == q1
        self.label(Lj)
        self.stamp()


def reduce_g(k, a, t):
    for sw in ("v_permlane32_swap_b32", "v_permlane16_swap_b32"):
        k.e(f"""
        v_mov_b32 v{t}, v{a}
        v_mov_b32 v{t+1}, v{a+1}
        {sw} v{a}, v{t}
        {sw} v{a+1}, v{t+1}
        v_add_f32 v{a}, v{a}, v{t}
        v_add_f32 v{a+1}, v{a+1}, v{t+1}
        """)


def mean_rstd(k, s, mean, rstd, t):
    k.e(f"""
    v_mul_f32 v{mean}, {hexf(1.0/576)}, v{s}
    v_mul_f32 v{t}, {hexf(1.0/576)}, v{s+1}
    v_fma_f32 v{t}, -v{mean}, v{mean}, v{t}
    v_max_f32 v{t}, 0, v{t}
    v_add_f32 v{t}, {hexf(1e-5)}, v{t}
    v_rsq_f32 v{rstd}, v{t}
    """)


def resid_round(k, a, x, d, t):
    k.e(f"""
    v_cvt_pk_bf16_f32 v{d}, v{a[0]}, v{a[1]}
    v_cvt_pk_bf16_f32 v{d+1}, v{a[2]}, v{a[3]}
    v_lshlrev_b32 v{t}, 16, v{x}
    v_and_b32 v{t+1}, 0xffff0000, v{x}
    v_lshlrev_b32 v{t+2}, 16, v{x+1}
    v_and_b32 v{t+3}, 0xffff0000, v{x+1}
    v_lshlrev_b32 v{a[0]}, 16, v{d}
    v_and_b32 v{a[1]}, 0xffff0000, v{d}
    v_lshlrev_b32 v{a[2]}, 16, v{d+1}
    v_and_b32 v{a[3]}, 0xffff0000, v{d+1}
    v_add_f32 v{a[0]}, v{a[0]}, v{t}
    v_add_f32 v{a[1]}, v{a[1]}, v{t+1}
    v_add_f32 v{a[2]}, v{a[2]}, v{t+2}
    v_add_f32 v{a[3]}, v{a[3]}, v{t+3}
    v_cvt_pk_bf16_f32 v{d}, v{a[0]}, v{a[1]}
    v_cvt_pk_bf16_f32 v{d+1}, v{a[2]}, v{a[3]}
    """)


GSZ = 36864
CSOFF = 4 * GSZ
PDW = int(os.environ.get("PDW", "4"))
NB = 6
EXP = os.environ.get("EXP", "")
ACC = 16
WFR = ACC + 72
ACT = WFR + 4 * NB
TMP = ACT + 64


def acc(tt, nt):
    return r(ACC + (tt * 9 + nt) * 4, 4)


def wfr(f):
    return r(WFR + (f % NB) * 4, 4)


def act(s, tt):
    return r(ACT + ((((s >> 1) & 3) * 2 + (s & 1)) * 2 + tt) * 4, 4)


def gb_setup(k):
    k.lane_setup()
    k.e(f"""
    s_and_b32 s17, s16, 3
    s_lshr_b32 s18, s16, 2
    s_mul_i32 s19, s18, 9216
    v_add_u32 v4, s19, v1
    v_add_u32 v5, {GSZ}, v4
    v_add_u32 v6, {2*GSZ}, v4
    v_add_u32 v7, {3*GSZ}, v4
    s_mul_i32 s20, s16, 4608
    s_mul_i32 s21, s16, 2304
    s_mov_b32 s22, -1
    s_mov_b32 s23, 0
    s_mov_b32 s24, 0xffff
    s_mov_b32 s25, 0
    """)


def gb_dma_ops(k, G, nsteps, sW, rot, tg="dma"):
    full = (2 * G + 1 < nsteps)
    src, dst = G * GSZ, ((G + rot) & 3) * GSZ
    sw = 20 if full else 21
    n = 4 if full else 2

    def piece(i):
        if i == 0:
            k.e(f"""
            s_add_u32 m0, s{sw}, {dst}
            s_add_u32 s26, s{sW}, s{sw}
            s_add_u32 s26, s26, {src}
            """)
        k.vm(f"buffer_load_dwordx4 v1, {SW}, s26 offen offset:{1024*i} {SC} lds", tag=(tg, G))

    def last():
        k.e(f"""
        s_add_u32 m0, m0, {1024*n}
        s_add_u32 s26, s26, {1024*n}
        s_mov_b64 exec, s[{22 if full else 24}:{23 if full else 25}]
        """)
        k.vm(f"buffer_load_dwordx4 v1, {SW}, s26 offen {SC} lds", tag=(tg, G))
        k.e("s_mov_b64 exec, -1")
    return [lambda i=i: piece(i) for i in range(n)] + [last]


def gb_act_ops(k, G, nsteps, sA, sB):
    def a(s, tt):
        sr = sB if tt else sA
        if s % 4 == 0 and s:
            k.e(f"s_add_u32 s{sr}, s{sr}, 4096")
        k.vm(f"buffer_load_dwordx4 {act(s,tt)}, v1, {SA}, s{sr} offen offset:{1024*(s%4)} {SC}", tag=("act", s))
    return [lambda s=s, tt=tt: a(s, tt) for s in (2 * G, 2 * G + 1) if s < nsteps for tt in range(2)]


def gb_main(k, nsteps, sW, sA, sB, swap, npre, rot, extra=None, hook=None, skip0=False):
    NG = (nsteps + 1) // 2
    NF = nsteps * 9
    pend = []

    def rd(f):
        s, nt = divmod(f, 9)
        G = s >> 1
        if f % 18 == 0:
            while pend:
                pend.pop(0)()
            k.wait(vm=("dma", G))
            if hook:
                hook(G)
            if G or not skip0:
                k.e("s_barrier")
            if G == 0:
                k.stamp()
            if G + 2 < NG:
                if G + 2 >= npre:
                    pend.extend(gb_dma_ops(k, G + 2, nsteps, sW, rot))
                pend.extend(gb_act_ops(k, G + 2, nsteps, sA, sB))
            if extra and G in extra:
                pend.extend(extra[G])
        k.lg(f"ds_read_b128 {wfr(f)}, v{4+((G+rot)&3)} offset:{(s&1)*18432 + nt*1024}", tag=("w", f))

    for f in range(PDW):
        rd(f)
    for f in range(NF):
        s, nt = divmod(f, 9)
        if f + PDW < NF:
            rd(f + PDW)
        k.wait(vm=("act", s) if nt == 0 else None, lg=("w", f))
        for tt in range(2):
            c = "0" if s == 0 else acc(tt, nt)
            if swap:
                k.e(f"v_mfma_f32_16x16x32_bf16 {acc(tt,nt)}, {act(s,tt)}, {wfr(f)}, {c}")
            else:
                k.e(f"v_mfma_f32_16x16x32_bf16 {acc(tt,nt)}, {wfr(f)}, {act(s,tt)}, {c}")
        left = 18 - ((f + PDW) % 18)
        GP = int(os.environ.get("GP", "2"))
        npop = (len(pend) + left - 1) // left if (len(pend) * GP >= left or f % GP == 0) else 0
        if f + PDW >= NF:
            npop = len(pend)
        for _ in range(npop):
            if pend:
                pend.pop(0)()
    assert not pend
    k.stamp()


def gb_exchange(k):
    k.e(f"""
    s_mul_i32 s26, s16, 9216
    v_add_u32 v8, s26, v1
    s_xor_b32 s26, s16, 4
    s_mul_i32 s26, s26, 9216
    v_add_u32 v9, s26, v1
    s_barrier
    """)
    for nt in range(9):
        k.lg(f"ds_write_b128 v8, {acc(1,nt)} offset:{nt*1024}")
    k.wait_all(vm=False)
    k.e("s_barrier")
    for nt in range(9):
        k.lg(f"ds_read_b128 {acc(1,nt)}, v9 offset:{nt*1024}", tag=("x", nt))


def gb_xadd(k, nt):
    k.wait(lg=("x", nt))
    for i in range(4):
        a = ACC + nt * 4 + i
        k.e(f"v_add_f32 v{a}, v{a}, v{a+36}")


QSCALE = (18 ** -0.5) * 1.4426950408889634


def phase_qkv(k):
    CSP = TMP
    ST = TMP + 20
    Lend, Lv, Lpub = k.lab("qend"), k.lab("qv"), k.lab("qpub")
    k.e(f"""
    s_cmp_ge_u32 s2, 192
    s_cbranch_scc1 {Lend}
    """)
    k.stamp()
    gb_setup(k)
    k.e(f"""
    s_and_b32 s31, s2, 1
    s_lshl_b32 s31, s31, 3
    s_bfe_u32 s32, s2, 0x30003
    s_add_u32 s31, s31, s32
    s_lshr_b32 s32, s2, 6
    s_lshl_b32 s32, s32, 2
    s_bfe_u32 s33, s2, 0x20001
    s_add_u32 s32, s32, s33
    s_lshl_b32 s47, s33, 6
    s_lshr_b32 s46, s2, 6
    s_lshl_b32 s46, s46, 4
    s_add_u32 s47, s47, s46
    s_add_u32 s47, s47, s31
    s_lshl_b32 s47, s47, 7
    s_add_u32 s47, s47, {F_QKV}
    s_mul_i32 s33, s32, {9*18432}
    s_add_u32 s33, s33, {WQKVP}
    s_lshl_b32 s34, s31, 3
    s_lshl_b32 s35, s17, 1
    s_add_u32 s34, s34, s35
    s_add_u32 s36, s34, s18
    s_xor_b32 s35, s18, 1
    s_add_u32 s37, s34, s35
    s_mul_i32 s35, s18, 9
    s_mul_i32 s38, s36, 18
    s_add_u32 s38, s38, s35
    s_lshl_b32 s38, s38, 10
    s_add_u32 s38, s38, {XA}
    s_mul_i32 s39, s37, 18
    s_add_u32 s39, s39, s35
    s_lshl_b32 s39, s39, 10
    s_add_u32 s39, s39, {XA}
    s_lshl_b32 s27, s31, 11
    s_add_u32 s27, s27, {F_RED}
    s_mul_i32 s40, s32, 576
    s_add_u32 s40, s40, {CSQ}
    s_lshl_b32 s41, s16, 6
    v_add_u32 v12, s41, v0
    v_lshlrev_b32 v10, 2, v12
    v_add_u32 v11, s40, v10
    v_cmp_gt_u32 vcc, 144, v12
    v_mov_b32 v12, {OOB}
    v_add_u32 v10, {CSOFF}, v10
    v_cndmask_b32 v11, v12, v11, vcc
    s_mov_b32 s42, 0
    s_lshl_b32 s41, s36, 11
    s_add_u32 s41, s41, {STA}
    v_lshlrev_b32 v12, 3, v0
    """)
    NPRE = 2
    def l0():
        k.e(f"""
        s_mul_i32 s27, s32, 18
        v_add_u32 v13, s27, v0
        s_lshl_b32 s27, s31, 3
        s_sub_u32 s27, s27, 18
        v_add_u32 v14, s27, v0
        v_cmp_gt_u32 vcc, 18, v0
        s_mov_b32 s27, {F_P0}
        s_nop 0
        v_cndmask_b32 v13, v14, v13, vcc
        v_lshlrev_b32 v13, 7, v13
        s_mov_b64 exec, 0x3ffffff
        """)
    k.vmq = []
    k.await_(27, 16, None, l0=l0)
    Lw = k.lab("qw")
    k.e(f"""
    s_cmp_lg_u32 s{LAY}, 0
    s_cbranch_scc1 {Lw}
    """)
    for G in range(2):
        for o in gb_dma_ops(k, G, 9, 33, 2):
            o()
    k.label(Lw)
    for G in range(2):
        for o in gb_act_ops(k, G, 9, 38, 39):
            o()

    def csl(kb):
        k.vm(f"buffer_load_dword v{CSP+kb}, v11, {SW}, s42 offen {SC}", tag="cs")
        k.e(f"s_add_u32 s42, s42, {12*144*4}")

    def stl(i):
        k.vm(f"buffer_load_dwordx2 {r(ST+2*i,2)}, v12, {SA}, s41 offen offset:{512*i} {SC}", tag="cs")

    extra = {3: [lambda kb=kb: csl(kb) for kb in range(18)] + [lambda i=i: stl(i) for i in range(4)]}

    def finish_cs():
        k.wait(vm="cs")
        for i in range(1, 18):
            k.e(f"v_add_f32 v{CSP}, v{CSP}, v{CSP+i}")
        k.lg(f"ds_write_b32 v10, v{CSP}")

    def stats_finish():
        for i in range(1, 4):
            k.e(f"v_add_f32 v{ST}, v{ST}, v{ST+2*i}")
            k.e(f"v_add_f32 v{ST+1}, v{ST+1}, v{ST+2*i+1}")
        reduce_g(k, ST, ST + 2)
        mean_rstd(k, ST, 12, 13, 14)

    vmq0, lgq0, nst0 = list(k.vmq), list(k.lgq), getattr(k, "nst", 0)
    k.e(f"""
    s_cmp_ge_u32 s32, 8
    s_cbranch_scc1 {Lv}
    """)
    CS = ACT
    gb_main(k, 9, 33, 38, 39, False, NPRE, 2, extra)
    finish_cs()
    gb_exchange(k)
    k.e(f"""
    v_lshlrev_b32 v8, 4, v3
    v_add_u32 v8, {CSOFF}, v8
    """)
    for nt in range(9):
        k.lg(f"ds_read_b128 {r(CS+4*nt,4)}, v8 offset:{nt*64}", tag=("cs", nt))
    k.e(f"""
    s_mov_b32 s42, {hexf(QSCALE)}
    s_cmp_lt_u32 s32, 4
    s_cselect_b32 s42, s42, 1.0
    s_cselect_b32 s43, {QF}, 0
    s_cselect_b32 s44, {QL}, 0
    s_cselect_b32 s45, 0, {KF}
    s_cselect_b32 s46, 0, {KL}
    s_add_u32 s43, s43, s45
    s_add_u32 s44, s44, s46
    s_and_b32 s45, s32, 3
    s_lshl_b32 s46, s45, 19
    s_add_u32 s43, s43, s46
    s_lshr_b32 s46, s36, 1
    s_lshl_b32 s46, s46, 10
    s_add_u32 s43, s43, s46
    s_and_b32 s46, s36, 1
    s_lshl_b32 s46, s46, 8
    s_add_u32 s43, s43, s46
    v_lshrrev_b32 v9, 1, v3
    v_lshlrev_b32 v9, 16, v9
    v_and_b32 v10, 1, v3
    v_lshl_add_u32 v9, v10, 9, v9
    v_lshl_add_u32 v9, v2, 4, v9
    s_lshl_b32 s46, s45, 16
    s_add_u32 s44, s44, s46
    s_lshl_b32 s46, s36, 7
    s_add_u32 s44, s44, s46
    v_lshlrev_b32 v10, 14, v3
    v_lshl_add_u32 v10, v2, 3, v10
    """)
    stats_finish()
    k.e("v_mul_f32 v13, s42, v13")
    for nt in range(9):
        gb_xadd(k, nt)
    for nt in range(9):
        k.wait(lg=("cs", nt))
        for i in range(4):
            a = ACC + nt * 4 + i
            k.e(f"v_fma_f32 v{a}, -v12, v{CS+4*nt+i}, v{a}")
            k.e(f"v_mul_f32 v{a}, v13, v{a}")
        a = ACC + nt * 4
        d = WFR + nt * 2
        k.e(f"v_cvt_pk_bf16_f32 v{d}, v{a}, v{a+1}")
        k.e(f"v_cvt_pk_bf16_f32 v{d+1}, v{a+2}, v{a+3}")
        if nt & 1:
            k.e(f"buffer_store_dwordx4 {r(d-2,4)}, v9, {SA}, s43 offen {SC}")
            k.e(f"s_add_u32 s43, s43, {2*65536}")
        if nt == 8:
            k.e(f"buffer_store_dwordx2 {r(d,2)}, v10, {SA}, s44 offen {SC}")
    k.e(f"s_branch {Lpub}")
    k.label(Lv)
    k.vmq, k.lgq, k.nst = vmq0, lgq0, nst0
    gb_main(k, 9, 33, 38, 39, True, NPRE, 2, extra)
    finish_cs()
    gb_exchange(k)
    k.e(f"""
    v_lshlrev_b32 v8, 2, v2
    v_add_u32 v8, {CSOFF}, v8
    """)
    for nt in range(9):
        k.lg(f"ds_read_b32 v{CS+nt}, v8 offset:{nt*64}", tag=("cs", nt))
    k.e(f"""
    s_sub_u32 s45, s32, 8
    s_lshl_b32 s43, s45, 19
    s_lshl_b32 s46, s36, 9
    s_add_u32 s43, s43, s46
    s_add_u32 s43, s43, {VF}
    s_lshl_b32 s44, s45, 16
    s_add_u32 s44, s44, s46
    s_add_u32 s44, s44, {VT}
    v_and_b32 v10, 31, v0
    v_lshlrev_b32 v10, 4, v10
    v_lshrrev_b32 v9, 1, v3
    v_lshl_add_u32 v9, v9, 16, v10
    v_lshlrev_b32 v11, 4, v3
    """)
    stats_finish()
    MEAN, RSTD = CSP, CSP + 4
    k.e("s_nop 0")
    for i in range(4):
        k.lg(f"ds_bpermute_b32 v{MEAN+i}, v11, v12 offset:{4*i}", tag="bp")
        k.lg(f"ds_bpermute_b32 v{RSTD+i}, v11, v13 offset:{4*i}", tag="bp")
    for nt in range(9):
        gb_xadd(k, nt)
    k.wait(lg="bp")
    for nt in range(9):
        for i in range(4):
            a = ACC + nt * 4 + i
            k.e(f"v_fma_f32 v{a}, -v{MEAN+i}, v{CS+nt}, v{a}")
            k.e(f"v_mul_f32 v{a}, v{RSTD+i}, v{a}")
        a = ACC + nt * 4
        d = WFR + nt * 2
        k.e(f"v_cvt_pk_bf16_f32 v{d}, v{a}, v{a+1}")
        k.e(f"v_cvt_pk_bf16_f32 v{d+1}, v{a+2}, v{a+3}")
        if nt == 8:
            k.e(f"v_mov_b32 v{d+2}, v{d}")
            k.e(f"v_mov_b32 v{d+3}, v{d+1}")
            d += 2
        if nt & 1 or nt == 8:
            k.e(f"v_permlane32_swap_b32 v{d-2}, v{d}")
            k.e(f"v_permlane32_swap_b32 v{d-1}, v{d+1}")
        if nt & 1:
            k.e(f"buffer_store_dwordx4 {r(d-2,4)}, v9, {SA}, s43 offen {SC}")
            k.e(f"s_add_u32 s43, s43, {2*65536}")
        elif nt == 8:
            k.e("s_mov_b64 exec, s[22:23]")
            k.e(f"buffer_store_dwordx4 {r(d-2,4)}, v10, {SA}, s44 offen {SC}")
            k.e("s_mov_b64 exec, -1")
    k.label(Lpub)
    k.publish(47, slot=0)
    k.label(Lend)
    k.vmq, k.lgq = [], []


LK1, LV, LK2 = 0, 65536, 65536 + 73728
ATX = 0
FLAGOFF = ATX + 8 * 3072
WOF = 184
W9 = 3 * GSZ
Q1, Q2, K1, K2, VV, PP, CM, SS, OO, NV = 16, 24, 28, 40, 48, 72, 88, 120, 152, 184
PRIO_U = int(os.environ.get("PRIO_U", "56"))


def phase_attn(k):
    k.stamp()
    k.lane_setup(half32=True)
    k.e(f"""
    s_and_b32 s17, s16, 3
    s_lshr_b32 s18, s16, 2
    s_and_b32 s19, s2, 7
    s_lshl_b32 s19, s19, 2
    s_bfe_u32 s20, s2, 0x20003
    s_add_u32 s19, s19, s20
    s_lshr_b32 s20, s2, 5
    s_lshl_b32 s21, s20, 3
    s_lshl_b32 s22, s17, 1
    s_add_u32 s21, s21, s22
    s_add_u32 s22, s21, s18
    s_xor_b32 s23, s18, 1
    s_add_u32 s23, s21, s23
    s_lshl_b32 s24, s19, 16
    s_lshr_b32 s25, s19, 1
    s_lshl_b32 s25, s25, 14
    s_and_b32 s26, s19, 1
    s_lshl_b32 s26, s26, 2
    s_add_u32 s25, s25, s26
    v_lshlrev_b32 v4, 3, v2
    s_mov_b32 s28, -1
    s_mov_b32 s29, 0
    s_mov_b32 s30, 0x3ffff
    s_mov_b32 s31, 0x3ffff
    s_mov_b32 s44, 0
    v_cmp_eq_u32 vcc, 18, v2
    v_cmp_eq_u32 s[32:33], 20, v2
    v_mov_b32 v6, 0x3f803f80
    s_or_b64 vcc, vcc, s[32:33]
    s_lshl_b32 s32, s22, 10
    s_add_u32 s32, s32, s24
    s_add_u32 s32, s32, {QF}
    s_lshl_b32 s33, s23, 10
    s_add_u32 s33, s33, s24
    s_add_u32 s33, s33, {QF}
    s_lshl_b32 s35, s22, 8
    s_add_u32 s35, s35, s25
    s_add_u32 s35, s35, {QL}
    s_lshl_b32 s36, s23, 8
    s_add_u32 s36, s36, s25
    s_add_u32 s36, s36, {QL}
    v_cndmask_b32 v6, 0, v6, vcc
    v_mov_b32 v{PP+5}, 0
    s_lshr_b32 s27, s19, 3
    s_lshl_b32 s27, s27, 13
    s_add_u32 s27, s27, {F_QKV}
    s_lshl_b32 s26, s20, 5
    s_add_u32 s26, s26, s19
    s_lshl_b32 s26, s26, 7
    s_add_u32 s26, s26, {F_ATT}
    """)
    for i in range(4):
        k.e(f"v_mov_b32 v{Q2+i}, 0")
    for i in range(4):
        k.e(f"v_mov_b32 v{K2+i}, 0")
    for i in range(16):
        k.e(f"v_mov_b32 v{VV+i}, v6")
    k.e(f"""
    s_lshl_b32 s45, s16, 10
    s_add_u32 s34, s24, s45
    s_add_u32 s34, s34, {KF}
    s_lshl_b32 s46, s17, 8
    s_lshl_b32 s47, s18, 12
    s_add_u32 s46, s46, s47
    s_lshl_b32 s37, s46, 1
    s_add_u32 s37, s37, s25
    s_add_u32 s37, s37, {KL}
    s_add_u32 s46, s46, {LK2}
    s_add_u32 s38, s24, {VF}
    s_lshr_b32 s39, s19, 3
    s_lshl_b32 s39, s39, 16
    s_and_b32 s42, s19, 7
    s_lshl_b32 s42, s42, 5
    s_add_u32 s39, s39, s42
    s_sub_u32 s39, s39, s24
    s_add_u32 s39, s39, {VT - VF - 256}
    s_lshl_b32 s41, s16, 6
    v_lshlrev_b32 v7, 3, v0
    """)
    for dst, base in ((8, "s41"), (9, "512")):
        k.e(f"""
        v_add_u32 v10, {base}, v0
        v_mul_u32_u24 v11, 3641, v10
        v_lshrrev_b32 v11, 16, v11
        v_mul_u32_u24 v12, 18, v11
        v_sub_u32 v12, v10, v12
        v_cmp_gt_u32 vcc, 16, v12
        v_lshlrev_b32 v{dst}, 8, v11
        v_lshl_add_u32 v{dst}, v12, 4, v{dst}
        v_mov_b32 v10, s39
        v_cndmask_b32 v10, v10, 0, vcc
        v_add_u32 v{dst}, v{dst}, v10
        """)
    k.e(f"""
    s_mul_i32 s41, s18, 36864
    s_add_u32 s41, s41, {LV}
    v_mul_u32_u24 v5, 288, v3
    v_lshl_add_u32 v5, v2, 4, v5
    v_add_u32 v5, s41, v5
    s_lshl_b32 s41, s18, 15
    v_add_u32 v10, s41, v1
    s_lshl_b32 s41, s18, 12
    v_lshlrev_b32 v12, 2, v2
    v_add_u32 v12, {LK2}, v12
    v_add_u32 v11, s41, v12
    """)
    PA = NV
    PD = PA + 8
    PO = PD + 32
    PN = PO + 8
    PC = PN + 4
    Lnp = k.lab("anp")
    k.e(f"""
    s_cmp_lg_u32 s{LAY}, 0
    s_cbranch_scc1 {Lnp}
    s_lshl_b32 s{PS+28}, s2, 3
    s_add_u32 s{PS+28}, s{PS+28}, s16
    s_mov_b32 s{PS+29}, 0x05040100
    s_mov_b32 s{PS+30}, 0x07060302
    """)
    ffn_task_setup(k, k.lab("t_"), PS + 28, PS, PA, 0)
    for i in range(4):
        k.e(f"v_mov_b32 v{PN+i}, 0x3f803f80")
    k.label(Lnp)
    k.e(f"""
    s_and_b32 s41, s2, 1
    s_lshl_b32 s41, s41, 1
    s_lshr_b32 s42, s2, 7
    s_add_u32 s41, s41, s42
    s_mul_i32 s41, s41, 9
    s_add_u32 s41, s41, s16
    s_mul_i32 s17, s41, {18*1024}
    s_add_u32 s17, s17, {WOP}
    """)
    def l0():
        k.e("s_mov_b32 exec_hi, 0xfffffff")
    k.await_(27, 48, l0=l0)
    k.vm(f"buffer_load_dwordx4 {r(Q1,4)}, v1, {SA}, s32 offen {SC}")
    k.vm(f"buffer_load_dwordx4 {r(Q1+4,4)}, v1, {SA}, s33 offen {SC}")
    k.e("s_mov_b64 exec, s[28:29]")
    k.vm(f"buffer_load_dword v{Q2}, v4, {SA}, s35 offen {SC}")
    k.vm(f"buffer_load_dword v{Q2+2}, v4, {SA}, s36 offen {SC}")
    k.e("s_mov_b64 exec, -1")

    def fill_ops(stage):
        order = [0, 4, 1, 5, 2, 6, 3, 7]
        ops = []

        def k1(p, tg):
            k.e(f"s_add_u32 m0, s45, {LK1 + p*8192}")
            k.e(f"s_add_u32 s41, s34, {p*8192}")
            k.vm(f"buffer_load_dwordx4 v1, {SA}, s41 offen {SC} lds", tag=tg)

        def k2(p, tg):
            k.e(f"s_add_u32 m0, s46, {p*1024}")
            k.e(f"s_add_u32 s41, s37, {p*2048}")
            k.vm(f"buffer_load_dword v7, {SA}, s41 offen {SC} lds", tag=tg)

        def vv(p, tg):
            k.e(f"s_add_u32 m0, s45, {LV + p*9216}")
            k.e(f"s_add_u32 s41, s38, {p*8192}")
            k.vm(f"buffer_load_dwordx4 v8, {SA}, s41 offen {SC} lds", tag=tg)

        def v9(tg):
            k.e(f"""
            s_mul_i32 s41, s16, 9216
            s_add_u32 m0, s41, {LV + 8192}
            s_lshl_b32 s41, s16, 13
            s_add_u32 s41, s41, s38
            """)
            k.vm(f"buffer_load_dwordx4 v9, {SA}, s41 offen {SC} lds", tag=tg)
        for n, p in enumerate(order):
            tg = "A" if n < 2 else "B"
            if tg != stage:
                continue
            ops.append(lambda p=p, tg=tg: k1(p, tg))
            if n % 2 == 0:
                ops.append(lambda p=p, tg=tg: k2(p, tg))
            ops.append(lambda p=p, tg=tg: vv(p, tg))
            if n == 1:
                ops.append(lambda tg=tg: v9(tg))
        return ops
    for o in fill_ops("A"):
        o()
    k.wait(vm="A")
    k.e("s_barrier")

    def load_k(kt):
        b = kt & 1
        k.lg(f"ds_read_b128 {r(K1+4*b,4)}, v10 offset:{kt*1024}", tag=("k", kt))
        k.lg(f"ds_read_b32 v{K2+2*b}, v11 offset:{kt*128}", tag=("k", kt))

    def load_v(kt):
        b = kt & 1
        k.e("s_mov_b64 exec, s[30:31]")
        k.lg(f"ds_read_b128 {r(VV+8*b,4)}, v5 offset:{kt*1152}", tag=("v", kt))
        k.lg(f"ds_read_b128 {r(VV+8*b+4,4)}, v5 offset:{kt*1152+576}", tag=("v", kt))
        k.e("s_mov_b64 exec, -1")

    k.lg(f"ds_read_b128 {r(PP,4)}, v1")
    k.lg(f"ds_read_b32 v{PP+4}, v12")
    k.wait_all(vm=False)
    for qt in range(2):
        k.e(f"v_mfma_f32_32x32x16_bf16 {r(SS+16*qt,16)}, {r(PP,4)}, {r(Q1+4*qt,4)}, 0")
        k.e(f"v_mfma_f32_32x32x8_bf16 {r(SS+16*qt,16)}, {r(PP+4,2)}, {r(Q2+2*qt,2)}, {r(SS+16*qt,16)}")
    for qt in range(2):
        s = SS + 16 * qt
        k.e(f"v_max3_f32 v{14+qt}, v{s}, v{s+1}, v{s+2}")
        for i in range(3, 15, 2):
            k.e(f"v_max3_f32 v{14+qt}, v{14+qt}, v{s+i}, v{s+i+1}")
        k.e(f"v_max_f32 v{14+qt}, v{14+qt}, v{s+15}")
    Lset, Lplain, Ltail, Lfb, Lfl, Ldone, Lnpr = (k.lab(x) for x in ("setmax", "plain", "tail", "fb", "fbl", "adone", "npr"))
    k.label(Lset)
    load_k(0)
    load_k(1)
    load_v(0)
    k.e(f"""
    v_mov_b32 v{CM}, v14
    v_mov_b32 v{CM+1}, v15
    s_nop 1
    v_permlane32_swap_b32 v14, v{CM}
    v_permlane32_swap_b32 v15, v{CM+1}
    v_max_f32 v14, v14, v{CM}
    v_max_f32 v15, v15, v{CM+1}
    """)
    for i in range(16):
        k.e(f"v_sub_f32 v{CM+i}, 0, v14")
    NU = 64

    def qk(u, part):
        kt, qt = u >> 1, u & 1
        b = kt & 1
        s = r(SS + 16 * (u & 1), 16)
        if part == 0:
            if qt == 0:
                k.wait(lg=("k", kt))
            k.e(f"v_mfma_f32_32x32x16_bf16 {s}, {r(K1+4*b,4)}, {r(Q1+4*qt,4)}, {r(CM+16*qt,16)}")
        else:
            k.e(f"v_mfma_f32_32x32x8_bf16 {s}, {r(K2+2*b,2)}, {r(Q2+2*qt,2)}, {s}")

    def pv(u, part):
        kt, qt = u >> 1, u & 1
        b = kt & 1
        o = r(OO + 16 * qt, 16)
        if part == 0 and qt == 0:
            k.wait(lg=("v", kt))
        c = "0" if (kt == 0 and part == 0) else o
        k.e(f"v_mfma_f32_32x32x16_bf16 {o}, {r(VV+8*b+4*part,4)}, {r(PP+8*(u&1)+4*part,4)}, {c}")

    qk(0, 0)
    qk(0, 1)
    for i in range(16):
        k.e(f"v_sub_f32 v{CM+16+i}, 0, v15")
    k.stamp()

    def main(prep):
        PU0 = 40

        def wl(kb):
            if kb == 0:
                k.e("s_mov_b32 s43, s17")
            if kb % 4 == 0 and kb:
                k.e("s_add_u32 s43, s43, 4096")
            k.vm(f"buffer_load_dwordx4 {r(WOF+4*kb,4)}, v1, {SW}, s43 offen offset:{1024*(kb%4)} {SC}")
        wo_ops = [lambda kb=kb: wl(kb) for kb in range(18)]
        bops = fill_ops("B")
        for u in range(NU):
            for _ in range(3):
                if bops:
                    bops.pop(0)()
            if u >= 52:
                for _ in range(2):
                    if wo_ops:
                        wo_ops.pop(0)()
            if u == PRIO_U:
                k.e("s_setprio 0")
            s = SS + 16 * (u & 1)
            p = PP + 8 * (u & 1)
            ops = []
            for i in range(16):
                ops.append(f"v_exp_f32 v{s+i}, v{s+i}")
                if i >= 3 and i % 2 == 1:
                    j = (i - 3) // 2
                    ops.append(f"v_cvt_pk_bf16_f32 v{p+j}, v{s+2*j}, v{s+2*j+1}")
            ops.append(f"v_cvt_pk_bf16_f32 v{p+7}, v{s+14}, v{s+15}")
            kt = u >> 1
            if u == 11:
                Ln = k.lab("npr")
                k.wait(vm="B")
                k.e(f"""
                s_barrier
                s_cmp_lt_u32 s16, 4
                s_cbranch_scc1 {Ln}
                s_setprio 1
                """)
                k.label(Ln)
            if u & 1:
                if kt + 2 < 32:
                    load_k(kt + 2)
                if kt + 1 < 32:
                    load_v(kt + 1)
            if prep:
                if 12 <= u < 28 and u % 2 == 0:
                    j = (u - 12) // 2
                    k.vm(f"buffer_load_dwordx4 {r(PD+4*j,4)}, v{PA}, s[{PS}:{PS+3}], s{PS+4+j} offen", tag="pd")
                c = u - PU0
                if 0 <= c < 8:
                    k.wait(vm="pd")
                    o = PO + 4 * (c & 1)
                    for jp in range(4):
                        k.e(f"v_perm_b32 v{o+jp}, v{PD+4*(2*jp+1)+(c>>1)}, v{PD+4*(2*jp)+(c>>1)}, s{PS+29+(c&1)}")
                    k.vm(f"buffer_store_dwordx4 {r(o,4)}, v{PA+1+(c>>2)}, {SW}, s{PS+12+(c&3)} offen {SC}")
                if 1 <= c < 9:
                    k.vm(f"buffer_store_dword v{PC+4*((c-1)&1)}, v{PA+3}, {SW}, 0 offen offset:{128*(c-1)} {SC}")
                if 0 <= c < 8:
                    k.e(f"v_mfma_f32_16x16x32_bf16 {r(PC+4*(c&1),4)}, {r(PN,4)}, {r(PO+4*(c&1),4)}, 0")
            ms = []
            if u + 1 < NU:
                ms += [lambda: qk(u + 1, 0), lambda: qk(u + 1, 1)]
            if u >= 1:
                ms += [lambda: pv(u - 1, 0), lambda: pv(u - 1, 1)]
            pos = {0: 0, 5: 1, 11: 2, 17: 3}
            for i, o in enumerate(ops):
                if i in pos and pos[i] < len(ms):
                    ms[pos[i]]()
                k.e(o)
        pv(NU - 1, 0)
        pv(NU - 1, 1)

    q0, l0 = list(k.vmq), list(k.lgq)
    k.e(f"""
    s_or_b32 s41, s{LAY}, s44
    s_cbranch_scc1 {Lplain}
    """)
    main(True)
    k.e(f"s_branch {Ltail}")
    k.label(Lplain)
    k.vmq, k.lgq = q0, l0
    main(False)
    k.label(Ltail)
    k.vmq = []
    k.stamp()
    FL = LK2 + 8192
    k.e(f"""
    v_cmp_eq_u32 vcc, 0, v3
    s_lshl_b32 s41, s16, 2
    s_add_u32 s41, s41, {FL}
    v_mov_b32 v13, s41
    v_mov_b32 v{SS+8}, {hexf(2.0**60)}
    s_mul_i32 s41, s16, 3072
    v_add_u32 v{SS+10}, s41, v1
    s_xor_b32 s41, s16, 4
    s_mul_i32 s41, s41, 3072
    v_add_u32 v{SS+11}, s41, v1
    v_cndmask_b32 v14, v{OO+8}, v{OO+10}, vcc
    v_cndmask_b32 v15, v{OO+24}, v{OO+26}, vcc
    v_cmp_nlt_f32 s[32:33], v14, v{SS+8}
    v_cmp_nlt_f32 s[20:21], v15, v{SS+8}
    s_or_b64 s[32:33], s[32:33], s[20:21]
    s_cmp_lg_u64 s[32:33], 0
    s_cselect_b32 s41, 1, 0
    v_mov_b32 v14, s41
    """)
    k.lg(f"ds_write_b32 v13, v14")
    k.e(f"""
    v_mov_b32 v13, {FL}
    s_lshl_b32 s41, s22, 1
    s_mul_i32 s41, s41, {18*1024}
    s_add_u32 s41, s41, {OB}
    s_lshr_b32 s42, s19, 1
    s_lshl_b32 s42, s42, 10
    s_and_b32 s43, s19, 1
    s_lshl_b32 s43, s43, 9
    s_add_u32 s42, s42, s43
    s_add_u32 s42, s42, s41
    v_lshrrev_b32 v14, 4, v2
    v_mul_u32_u24 v14, {18*1024}, v14
    v_and_b32 v15, 15, v2
    v_lshl_add_u32 v14, v15, 4, v14
    v_lshl_add_u32 v15, v3, 8, v14
    v_lshlrev_b32 v14, 2, v2
    s_lshl_b32 s41, s19, 13
    s_lshl_b32 s43, s22, 7
    s_add_u32 s41, s41, s43
    s_add_u32 s41, s41, {OL}
    """)
    k.wait_all(vm=False)
    k.e("s_barrier")
    k.lg(f"ds_read_b128 {r(SS,4)}, v13")
    k.lg(f"ds_read_b128 {r(SS+4,4)}, v13 offset:16")
    k.wait_all(vm=False)
    k.e(f"""
    v_or3_b32 v13, v{SS}, v{SS+1}, v{SS+2}
    v_or3_b32 v13, v13, v{SS+3}, v{SS+4}
    v_or3_b32 v13, v13, v{SS+5}, v{SS+6}
    v_or_b32 v13, v13, v{SS+7}
    s_nop 0
    v_readfirstlane_b32 s43, v13
    s_andn2_b32 s43, s43, s44
    s_cmp_lg_u32 s43, 0
    s_cbranch_scc1 {Lfb}
    """)
    for i in range(3):
        k.lg(f"ds_write_b128 v{SS+10}, {r(OO+16+4*i,4)} offset:{1024*i}")
    k.wait_all(vm=False)
    k.e("s_barrier")
    for i in range(3):
        k.lg(f"ds_read_b128 {r(OO+16+4*(2-i),4)}, v{SS+11} offset:{1024*(2-i)}", tag=("ox", 2 - i))
    k.wait(lg=("ox", 2))
    k.e(f"""
    v_add_f32 v{OO+8}, v{OO+8}, v{OO+24}
    v_add_f32 v{OO+10}, v{OO+10}, v{OO+26}
    v_add_f32 v{OO+9}, v{OO+9}, v{OO+25}
    v_cndmask_b32 v13, v{OO+8}, v{OO+10}, vcc
    v_rcp_f32 v13, v13
    """)
    k.wait_all(vm=False)
    for i in range(8):
        k.e(f"v_add_f32 v{OO+i}, v{OO+i}, v{OO+16+i}")
    for i in range(10):
        k.e(f"v_mul_f32 v{OO+i}, v{OO+i}, v13")
    for i in range(5):
        k.e(f"v_cvt_pk_bf16_f32 v{PP+i}, v{OO+2*i}, v{OO+2*i+1}")
    k.e(f"""
    buffer_store_dwordx4 {r(PP,4)}, v15, {SA}, s42 offen {SC}
    s_mov_b64 exec, s[28:29]
    buffer_store_dword v{PP+4}, v14, {SA}, s41 offen {SC}
    s_mov_b64 exec, -1
    s_branch {Ldone}
    """)
    k.label(Lfb)
    k.e(f"""
    s_mov_b32 s44, 1
    s_mov_b32 s41, 64
    v_mov_b32 v14, 0xff800000
    v_mov_b32 v15, 0xff800000
    v_mov_b32 v{PP}, v1
    v_mov_b32 v{PP+1}, v12
    """)
    k.label(Lfl)
    k.e(f"""
    ds_read_b128 {r(K1,4)}, v{PP}
    ds_read_b32 v{K2}, v{PP+1}
    v_add_u32 v{PP}, 1024, v{PP}
    v_add_u32 v{PP+1}, 128, v{PP+1}
    s_waitcnt lgkmcnt(0)
    """)
    for qt in range(2):
        k.e(f"v_mfma_f32_32x32x16_bf16 {r(SS+16*qt,16)}, {r(K1,4)}, {r(Q1+4*qt,4)}, 0")
        k.e(f"v_mfma_f32_32x32x8_bf16 {r(SS+16*qt,16)}, {r(K2,2)}, {r(Q2+2*qt,2)}, {r(SS+16*qt,16)}")
    for qt in range(2):
        s = SS + 16 * qt
        for i in range(0, 16, 2):
            k.e(f"v_max3_f32 v{14+qt}, v{14+qt}, v{s+i}, v{s+i+1}")
    k.e(f"""
    s_sub_u32 s41, s41, 1
    s_cmp_lg_u32 s41, 0
    s_cbranch_scc1 {Lfl}
    s_branch {Lset}
    """)
    k.label(Ldone)
    k.vmq, k.lgq = [], []
    k.publish(26, slot=1)


def phase_wo(k):
    WF, OF, AC, XR = WOF, 88, 112, 124
    DD, TT = 132, 136
    OT = 3 * GSZ
    k.stamp()
    k.lane_setup()
    k.e(f"""
    s_bfe_u32 s17, s2, 0x20001
    s_lshl_b32 s17, s17, 4
    s_bfe_u32 s18, s2, 0x40003
    s_add_u32 s17, s17, s18
    s_and_b32 s18, s2, 1
    s_lshl_b32 s18, s18, 1
    s_lshr_b32 s19, s2, 7
    s_add_u32 s18, s18, s19
    s_mul_i32 s19, s18, 9
    s_add_u32 s31, s19, 8
    s_add_u32 s19, s19, s16
    s_mul_i32 s42, s17, 36864
    s_lshr_b32 s21, s16, 2
    s_mul_i32 s21, s21, 18432
    s_and_b32 s24, s16, 3
    s_lshl_b32 s24, s24, 12
    s_add_u32 s21, s21, s24
    s_add_u32 s43, s42, s21
    s_add_u32 s43, s43, {OB}
    s_lshl_b32 s32, s16, 15
    s_lshl_b32 s33, s17, 7
    s_add_u32 s32, s32, s33
    s_add_u32 s32, s32, {OL}
    s_lshl_b32 s33, s16, 8
    s_add_u32 s33, s33, {OT + 16384}
    v_and_b32 v7, 3, v0
    v_lshlrev_b32 v7, 13, v7
    v_and_b32 v8, 60, v0
    v_add_u32 v7, v7, v8
    s_lshl_b32 s24, s19, 9
    s_add_u32 s24, s24, s42
    v_lshrrev_b32 v4, 1, v3
    v_lshlrev_b32 v4, 8, v4
    v_lshl_add_u32 v4, v2, 4, v4
    v_and_b32 v5, 1, v3
    v_mul_u32_u24 v8, 18432, v5
    v_add_u32 v8, v8, v4
    v_lshl_add_u32 v4, v5, 3, v4
    s_add_u32 s25, s24, {XA}
    s_add_u32 s27, s24, {XB}
    s_and_b32 s34, s16, 1
    s_mul_i32 s34, s34, 18432
    s_lshl_b32 s35, s31, 9
    s_add_u32 s35, s35, s42
    s_add_u32 s35, s35, s34
    s_add_u32 s36, s35, {XB}
    s_add_u32 s35, s35, {XA}
    s_add_u32 s34, s34, {OT}
    v_add_u32 v6, s34, v1
    v_add_u32 v5, {OT}, v1
    v_add_u32 v9, {W9}, v1
    s_lshr_b32 s40, s17, 3
    s_lshl_b32 s40, s40, 12
    s_add_u32 s40, s40, {F_ATT}
    s_lshl_b32 s37, s17, 2
    s_add_u32 s37, s37, s18
    s_lshl_b32 s37, s37, 7
    s_add_u32 s37, s37, {F_WO}
    s_mul_i32 s29, s17, 9216
    s_add_u32 s29, s29, {STB}
    s_lshl_b32 s30, s31, 8
    s_add_u32 s41, s29, s30
    s_and_b32 s30, s16, 1
    s_lshl_b32 s30, s30, 3
    s_add_u32 s41, s41, s30
    s_lshl_b32 s30, s19, 8
    s_add_u32 s29, s29, s30
    s_and_b32 s44, s2, 3
    s_lshl_b32 s44, s44, 3
    s_bfe_u32 s45, s2, 0x30003
    s_add_u32 s44, s44, s45
    s_mul_i32 s44, s44, {9*GSZ}
    s_add_u32 s44, s44, {W13P}
    s_mul_i32 s20, s16, 4608
    s_mov_b32 s22, -1
    s_mov_b32 s23, 0
    """)

    def pre():
        Lw = k.lab("w9l")
        k.e(f"""
        s_cmp_ge_u32 s16, 2
        s_cbranch_scc1 {Lw}
        s_mul_i32 s45, s31, {18*1024}
        s_add_u32 s45, s45, {WOP}
        """)
        for kb in range(18):
            if kb % 4 == 0 and kb:
                k.e("s_add_u32 s45, s45, 4096")
            k.e(f"buffer_load_dwordx4 {r(16+4*kb,4)}, v1, {SW}, s45 offen offset:{1024*(kb%4)} {SC}")
        k.label(Lw)
        k.vm(f"buffer_load_dwordx4 {r(XR,4)}, v8, {SA}, s25 offen {SC}", tag="x")
        k.vm(f"buffer_load_dwordx2 {r(XR+4,2)}, v4, {SA}, s35 offen {SC}", tag="x")
        if k.first_pre:
            k.first_pre = False
            f1_block(True)

    def f1_block(early):
        L = k.lab("f1")
        q = list(k.vmq)
        k.e(f"s_cmp_lg_u32 s38, 0")
        k.e(f"s_cbranch_scc{0 if early else 1} {L}")
        for G in range(3):
            for o in gb_dma_ops(k, G, 18, 44, 0, "f1"):
                o()
        k.label(L)
        k.vmq = q
    k.first_pre = True
    k.e(f"s_min_u32 s38, s16, s{LAY}")
    k.await_(40, 32, pre, all_layer0=F_ATT)
    k.e(f"s_add_u32 m0, s21, {OT}")
    k.e("s_nop 0")
    for i in range(4):
        k.vm(f"buffer_load_dwordx4 v1, {SA}, s43 offen offset:{1024*i} {SC} lds", tag="o")
    k.e(f"s_mov_b32 m0, s33")
    k.e("s_nop 0")
    k.vm(f"buffer_load_dword v7, {SA}, s32 offen {SC} lds", tag="o")
    k.e(f"s_add_u32 m0, s33, 18432")
    k.e(f"s_add_u32 s32, s32, 64")
    k.vm(f"buffer_load_dword v7, {SA}, s32 offen {SC} lds", tag="o")
    k.e(f"v_mov_b32 v14, 0x3f803f80")
    k.wait(vm="o")
    k.e("s_barrier")
    k.stamp()

    def rd(f):
        kb, tt = f >> 1, f & 1
        k.lg(f"ds_read_b128 {r(OF+4*(f%6),4)}, v5 offset:{tt*18432 + kb*1024}", tag=("o", f))

    for f in range(4):
        rd(f)
    f1_block(False)
    for f in range(36):
        kb, tt = f >> 1, f & 1
        if f + 4 < 36:
            rd(f + 4)
        k.wait(lg=("o", f))
        c = "0" if kb == 0 else r(AC + 4 * tt, 4)
        k.e(f"v_mfma_f32_16x16x32_bf16 {r(AC+4*tt,4)}, {r(WF+4*kb,4)}, {r(OF+4*(f%6),4)}, {c}")
    L9 = k.lab("w9")
    k.e(f"""
    s_cmp_ge_u32 s16, 2
    s_cbranch_scc1 {L9}
    """)
    for kb in range(18):
        k.lg(f"ds_read_b128 {r(WF+4*kb,4)}, v6 offset:{kb*1024}", tag=("a", kb))
        if kb >= 5:
            j = kb - 5
            k.wait(lg=("a", j))
            k.e(f"v_mfma_f32_16x16x32_bf16 {r(AC+8,4)}, {r(16+4*j,4)}, {r(WF+4*j,4)}, {'0' if j == 0 else r(AC+8,4)}")
    for j in range(13, 18):
        k.wait(lg=("a", j))
        k.e(f"v_mfma_f32_16x16x32_bf16 {r(AC+8,4)}, {r(16+4*j,4)}, {r(WF+4*j,4)}, {r(AC+8,4)}")
    resid_round(k, [AC + 8 + i for i in range(4)], XR + 4, DD, TT)
    k.e(f"""
    buffer_store_dwordx2 {r(DD,2)}, v4, {SA}, s36 offen {SC}
    v_mov_b32 v10, 0
    v_mov_b32 v11, 0
    v_dot2c_f32_bf16 v10, v{DD}, v14
    v_dot2c_f32_bf16 v11, v{DD}, v{DD}
    v_dot2c_f32_bf16 v10, v{DD+1}, v14
    v_dot2c_f32_bf16 v11, v{DD+1}, v{DD+1}
    s_nop 2
    """)
    reduce_g(k, 10, 12)
    k.e(f"""
    s_mov_b64 exec, 0xffff
    buffer_store_dwordx2 v[10:11], v1, {SA}, s41 offen {SC}
    s_mov_b64 exec, -1
    """)
    k.label(L9)
    k.lgq = []
    for i in range(4):
        k.e(f"v_permlane16_swap_b32 v{AC+i}, v{AC+4+i}")
    resid_round(k, [AC + i for i in range(4)], XR, DD, TT)
    resid_round(k, [AC + 4 + i for i in range(4)], XR + 2, DD + 2, TT)
    k.e(f"""
    buffer_store_dwordx4 {r(DD,4)}, v8, {SA}, s27 offen {SC}
    v_mov_b32 v{TT}, 0
    v_mov_b32 v{TT+1}, 0
    """)
    for i in range(4):
        k.e(f"v_dot2c_f32_bf16 v{TT}, v{DD+i}, v14")
        k.e(f"v_dot2c_f32_bf16 v{TT+1}, v{DD+i}, v{DD+i}")
    k.e(f"""
    s_nop 2
    v_mov_b32 v{TT+2}, v{TT}
    v_mov_b32 v{TT+3}, v{TT+1}
    v_permlane32_swap_b32 v{TT}, v{TT+2}
    v_permlane32_swap_b32 v{TT+1}, v{TT+3}
    v_add_f32 v{TT}, v{TT}, v{TT+2}
    v_add_f32 v{TT+1}, v{TT+1}, v{TT+3}
    v_mov_b32 v{TT+2}, v{TT}
    v_mov_b32 v{TT+3}, v{TT+1}
    v_permlane16_swap_b32 v{TT}, v{TT+2}
    v_permlane16_swap_b32 v{TT+1}, v{TT+3}
    s_mov_b64 exec, 0xffff
    buffer_store_dwordx4 {r(TT,4)}, v1, {SA}, s29 offen {SC}
    s_mov_b64 exec, -1
    """)
    k.publish(37, slot=2)


STG = 36864
F1_CS = 4 * STG


def phase_ffn1(k):
    XF = 16
    AC = XF + 144
    CV = AC + 64
    HP = CV + 8
    WF = HP + 8
    NM = 8
    NB, PDW = 4, 3
    P1 = 108

    def xf(tt, kb):
        return r(XF + (tt * 18 + kb) * 4, 4)

    def ac(st, tt, mt):
        return AC + ((st * 2 + tt) * 2 + mt) * 4

    k.stamp()
    k.lane_setup()
    k.e(f"""
    v_mov_b32 v4, v1
    v_add_u32 v5, {STG}, v1
    v_add_u32 v6, {2*STG}, v1
    v_add_u32 v7, {3*STG}, v1
    s_and_b32 s17, s2, 3
    s_lshl_b32 s17, s17, 3
    s_bfe_u32 s18, s2, 0x30003
    s_add_u32 s17, s17, s18
    s_bfe_u32 s18, s2, 0x10002
    s_lshl_b32 s18, s18, 2
    s_lshr_b32 s19, s2, 6
    s_add_u32 s18, s18, s19
    s_lshl_b32 s39, s18, 12
    s_lshl_b32 s40, s17, 7
    s_add_u32 s40, s40, s39
    s_add_u32 s40, s40, {F_F1}
    s_add_u32 s39, s39, {F_WO}
    s_lshl_b32 s19, s18, 4
    s_lshl_b32 s20, s16, 1
    s_add_u32 s19, s19, s20
    s_mul_i32 s20, s16, 4608
    s_mul_i32 s35, s17, {9*STG}
    s_add_u32 s35, s35, {W13P}
    s_add_u32 s21, s35, s20
    s_mov_b32 s22, -1
    s_mov_b32 s23, 0
    s_mul_i32 s24, s19, {18*1024}
    s_add_u32 s24, s24, {XB}
    s_add_u32 s25, s24, {18*1024}
    s_mul_i32 s28, s17, {9*128}
    s_add_u32 s28, s28, {CS13}
    s_lshl_b32 s29, s16, 6
    v_add_u32 v8, s29, v0
    v_lshlrev_b32 v12, 2, v8
    v_add_u32 v9, s28, v12
    v_cmp_gt_u32 vcc, 288, v8
    v_mov_b32 v8, {OOB}
    s_mov_b32 s29, 0
    v_cndmask_b32 v9, v8, v9, vcc
    s_mul_i32 s30, s19, {144*1024}
    s_add_u32 s30, s30, {HB}
    s_lshr_b32 s31, s17, 2
    s_mul_i32 s31, s31, 18432
    s_add_u32 s30, s30, s31
    s_and_b32 s31, s17, 3
    s_mul_i32 s32, s31, 3072
    s_add_u32 s33, s30, s32
    s_add_u32 s34, s33, {144*1024}
    s_lshl_b32 s32, s31, 10
    s_add_u32 s36, s30, s32
    s_add_u32 s36, s36, 12288
    s_add_u32 s37, s36, {144*1024}
    s_lshl_b32 s31, s31, 9
    s_add_u32 s30, s30, s31
    s_add_u32 s30, s30, 16384
    s_add_u32 s38, s40, {F_F1E - F_F1}
    v_lshlrev_b32 v15, 4, v3
    v_add_u32 v15, {F1_CS}, v15
    s_mul_i32 s27, s19, 4608
    s_add_u32 s27, s27, {STB}
    v_and_b32 v10, 1, v3
    v_mul_u32_u24 v10, {144*1024}, v10
    v_lshrrev_b32 v3, 1, v3
    v_lshl_add_u32 v3, v3, 8, v10
    v_lshl_add_u32 v3, v2, 4, v3
    s_lshr_b32 s41, s2, 6
    s_lshl_b32 s41, s41, 2
    s_and_b32 s42, s2, 3
    s_add_u32 s41, s41, s42
    s_mul_i32 s41, s41, {18*18432}
    s_add_u32 s41, s41, {W2P}
    """)

    def dma_ops(t):
        def piece(i):
            if i == 0:
                k.e(f"""
                s_add_u32 m0, s20, {(t&3)*STG}
                s_add_u32 s26, s21, {t*STG}
                """)
            k.vm(f"buffer_load_dwordx4 v1, {SW}, s26 offen offset:{1024*i} {SC} lds", tag=("dma", t))

        def last():
            k.e(f"""
            s_add_u32 m0, m0, 4096
            s_add_u32 s26, s26, 4096
            s_mov_b64 exec, s[22:23]
            """)
            k.vm(f"buffer_load_dwordx4 v1, {SW}, s26 offen {SC} lds", tag=("dma", t))
            k.e("s_mov_b64 exec, -1")
        return [lambda i=i: piece(i) for i in range(4)] + [last]

    def x_ops(kb):
        def one(tt):
            if kb % 4 == 0 and kb:
                k.e(f"s_add_u32 s{24+tt}, s{24+tt}, 4096")
            k.vm(f"buffer_load_dwordx4 {xf(tt,kb)}, v1, {SA}, s{24+tt} offen offset:{1024*(kb%4)} {SC}", tag=("x", kb))
        return [lambda tt=tt: one(tt) for tt in range(2)]

    CSP = ac(3, 0, 0)
    SG = CSP

    def cs_ops():
        def one(kb):
            k.vm(f"buffer_load_dword v{CSP+kb}, v9, {SW}, s29 offen {SC}", tag="cs")
            k.e(f"s_add_u32 s29, s29, {288*128}")
        return [lambda kb=kb: one(kb) for kb in range(18)]

    def st_ops(lo, hi):
        def one(i):
            if i % 4 == 0 and i:
                k.e(f"s_add_u32 s27, s27, 4096")
            k.vm(f"buffer_load_dwordx4 {r(SG+4*(i%7),4)}, v1, {SA}, s27 offen offset:{1024*(i%4)} {SC}", tag="st")
        return [lambda i=i: one(i) for i in range(lo, hi)]

    def pre():
        for o in cs_ops():
            o()
    k.await_(39, 32, pre)
    k.e(f"v_add_u32 v14, {F1_CS}, v12")

    cnt = {}
    for tg in k.vmq:
        cnt[tg] = cnt.get(tg, 0) + 1
    _vm = k.vm

    def vm_cnt(s, tag=None):
        _vm(s, tag)
        cnt[tag] = cnt.get(tag, 0) + 1
    k.vm = vm_cnt
    loadq = []
    XUP = int(os.environ.get("XUP", "3"))
    other = dma_ops(3) + st_ops(0, 7)
    for kb in range(18):
        loadq += x_ops(kb)
        if kb >= XUP + 2 and other:
            loadq.append(other.pop(0))
    loadq += other
    for _ in range(2 * XUP):
        loadq.pop(0)()

    def issue_all(tag, n):
        while cnt.get(tag, 0) < n:
            loadq.pop(0)()

    def epi_ops(t):
        st = t % 4
        ops = [("lg", f"ds_read_b128 {r(CV,4)}, v15 offset:{t*128}", ("cv", t)),
               ("lg", f"ds_read_b128 {r(CV+4,4)}, v15 offset:{t*128+64}", ("cv", t)),
               ("nop",), ("nop",), ("nop",), ("nop",),
               ("wait", ("cv", t))]
        for tt in range(2):
            g, u = ac(st, tt, 0), ac(st, tt, 1)
            for i in range(4):
                ops.append(("e", f"v_fmac_f32 v{g+i}, v{NM+tt}, v{CV+i}"))
                ops.append(("e", f"v_fmac_f32 v{u+i}, v{NM+tt}, v{CV+4+i}"))
            for i in range(4):
                ops.append(("e", f"v_mul_f32 v{u+i}, v{g+i}, v{u+i}"))
                ops.append(("e", f"v_mul_f32 v{g+i}, v{10+tt}, v{g+i}"))
            for i in range(4):
                ops.append(("e", f"v_exp_f32 v{g+i}, v{g+i}"))
            for i in range(4):
                ops.append(("e", f"v_fma_f32 v{g+i}, v{g+i}, v{12+tt}, v{12+tt}"))
            for i in range(4):
                ops.append(("e", f"v_rcp_f32 v{g+i}, v{g+i}"))
            for i in range(4):
                ops.append(("e", f"v_mul_f32 v{u+i}, v{u+i}, v{g+i}"))
            h = HP + 4 * tt + 2 * (t & 1) if t < 8 else HP + 2 * tt
            ops.append(("e", f"v_cvt_pk_bf16_f32 v{h}, v{u}, v{u+1}"))
            ops.append(("e", f"v_cvt_pk_bf16_f32 v{h+1}, v{u+2}, v{u+3}"))
            if t == 8:
                if tt == 1:
                    ops.append(("e", f"v_permlane16_swap_b32 v{HP}, v{HP+2}"))
                    ops.append(("e", f"v_permlane16_swap_b32 v{HP+1}, v{HP+3}"))
                    ops.append(("vm", f"buffer_store_dwordx4 {r(HP,4)}, v3, {SA}, s30 offen {SC}", ("h", t)))
            elif t == 7:
                ops.append(("vm", f"buffer_store_dwordx4 {r(h-2,4)}, v1, {SA}, s{36+tt} offen {SC}", ("h", t)))
            elif t & 1:
                ops.append(("vm", f"buffer_store_dwordx4 {r(h-2,4)}, v1, {SA}, s{33+tt} offen offset:{1024*(t>>1)} {SC}", ("h", t)))
        return ops

    def run_op(o):
        if o[0] == "e":
            k.e(o[1])
        elif o[0] == "lg":
            k.lg(o[1], tag=o[2])
        elif o[0] == "vm":
            k.vm(o[1], tag=o[2])
        elif o[0] == "wait":
            k.wait(lg=o[1])

    seq = [(t, kb, mt) for kb in range(18) for t in range(3) for mt in range(2)]
    seq += [(t, kb, mt) for t in range(3, 9) for kb in range(18) for mt in range(2)]
    NF = len(seq)
    fill = []

    def rd(F):
        t, kb, mt = seq[F]
        if F == 12:
            k.stamp()
            k.wait(vm="cs")
            for i in range(1, 18):
                k.e(f"v_add_f32 v{CSP}, v{CSP}, v{CSP+i}")
            k.lg(f"ds_write_b32 v14, v{CSP}")
        if F >= P1 and kb == 0 and mt == 0:
            issue_all(("dma", t), 5)
            if t == 8:
                while fill and fill[0][0] <= 5:
                    run_op(fill.pop(0)[1])
                k.wait_all(lg=False)
            else:
                k.wait(vm=("dma", t), lg=("w", F - 1) if t == 3 else None)
            k.e("s_barrier")
            if t in (3, 6):
                k.stamp()
            if t == 3:
                loadq.extend(dma_ops(4) + dma_ops(5) + dma_ops(6))
            elif t in (5, 6):
                loadq.extend(dma_ops(t + 2))
            elif t >= 7:
                loadq.extend(gb_dma_ops(k, t - 7, 18, 41, 1, "f2"))
            if t == 8:
                Le = k.lab("early")
                k.e(f"""
                s_cmp_lg_u32 s16, 0
                s_cbranch_scc1 {Le}
                v_mov_b32 v2, s{LAY}
                v_mov_b32 v14, s{NON}
                s_mov_b64 exec, 1
                buffer_store_dword v14, v2, {SA}, s38 offen sc1
                s_mov_b64 exec, -1
                """)
                k.label(Le)
        k.lg(f"ds_read_b128 {r(WF+4*(F%NB),4)}, v{4+(t&3)} offset:{(kb*2+mt)*1024}", tag=("w", F))

    for F in range(PDW):
        rd(F)
    LE = len(epi_ops(0))
    rate = float(os.environ.get("RATE", "1.5")) * LE / 72.0
    credit = 0.0
    SA_ = SG + 28
    for F in range(NF):
        t, kb, mt = seq[F]
        if F + PDW < NF:
            rd(F + PDW)
        if F < P1 and F % 6 == 0:
            issue_all(("x", kb), 2)
        k.wait(vm=("x", kb) if F < P1 else None, lg=("w", F))
        if F == 90:
            issue_all("st", 7)
            k.wait(vm="st")
            for j in range(4):
                k.e(f"v_add_f32 v{SA_+j}, v{SG+j}, v{SG+4+j}")
            for i in range(2, 7):
                for j in range(4):
                    k.e(f"v_add_f32 v{SA_+j}, v{SA_+j}, v{SG+4*i+j}")
            for o in st_ops(7, 9):
                o()
        if F == 102:
            k.wait(vm="st")
            for i in range(2):
                for j in range(4):
                    k.e(f"v_add_f32 v{SA_+j}, v{SA_+j}, v{SG+4*i+j}")
            for tt in range(2):
                reduce_g(k, SA_ + 2 * tt, SG)
                mean_rstd(k, SA_ + 2 * tt, NM + tt, 10 + tt, 12 + tt)
                k.e(f"""
                v_sub_f32 v{NM+tt}, 0, v{NM+tt}
                v_mul_f32 v{10+tt}, {hexf(-1.4426950408889634)}, v{10+tt}
                """)
        if F == P1:
            fill += [(tt_, o) for tt_ in range(3) for o in epi_ops(tt_)]
        if F > P1 and kb == 0 and mt == 0:
            while fill and fill[0][0] <= t - 4:
                run_op(fill.pop(0)[1])
            fill += [(t - 1, ("nop",))] * 3 + [(t - 1, o) for o in epi_ops(t - 1)]
        for tt in range(2):
            a = r(ac(t % 4, tt, mt), 4)
            c = "0" if kb == 0 else a
            k.e(f"v_mfma_f32_16x16x32_bf16 {a}, {r(WF+4*(F%NB),4)}, {xf(tt,kb)}, {c}")
            if F >= P1:
                credit += rate
                while credit >= 1.0 and fill:
                    run_op(fill.pop(0)[1])
                    credit -= 1.0
                if not fill:
                    credit = 0.0
        if loadq and F % 2 == 0:
            loadq.pop(0)()
    assert not loadq
    k.stamp()
    fill += [(8, o) for o in epi_ops(8)]
    while fill:
        run_op(fill.pop(0)[1])
    k.vm = _vm
    k.stamp()
    k.dump(3)


def phase_ffn2(k, Lloop):
    k.stamp()
    gb_setup(k)
    k.e(f"""
    s_and_b32 s30, s2, 3
    s_bfe_u32 s31, s2, 0x10002
    s_lshl_b32 s31, s31, 3
    s_bfe_u32 s32, s2, 0x30003
    s_add_u32 s31, s31, s32
    s_lshr_b32 s32, s2, 6
    s_lshl_b32 s33, s32, 2
    s_add_u32 s33, s33, s30
    s_mul_i32 s33, s33, {18*18432}
    s_add_u32 s33, s33, {W2P}
    s_lshl_b32 s34, s31, 3
    s_lshl_b32 s35, s17, 1
    s_add_u32 s34, s34, s35
    s_add_u32 s36, s34, s18
    s_xor_b32 s35, s18, 1
    s_add_u32 s37, s34, s35
    s_mul_i32 s35, s30, 36
    s_mul_i32 s38, s18, 18
    s_add_u32 s35, s35, s38
    s_mul_i32 s38, s36, 144
    s_add_u32 s38, s38, s35
    s_lshl_b32 s38, s38, 10
    s_add_u32 s38, s38, {HB}
    s_mul_i32 s39, s37, 144
    s_add_u32 s39, s39, s35
    s_lshl_b32 s39, s39, 10
    s_add_u32 s39, s39, {HB}
    s_lshr_b32 s27, s31, 1
    s_lshl_b32 s27, s27, 2
    s_add_u32 s27, s27, s30
    s_lshl_b32 s27, s27, 10
    s_add_u32 s27, s27, {F_F1}
    s_lshl_b32 s28, s31, 2
    s_add_u32 s28, s28, s32
    s_lshl_b32 s28, s28, 9
    s_lshl_b32 s29, s30, 7
    s_add_u32 s29, s29, s28
    s_add_u32 s19, s29, {F_F2}
    s_add_u32 s29, s29, {CSTR + F_RED}
    s_add_u32 s28, s28, {F_F2}
    s_lshl_b32 s46, s32, 2
    s_bfe_u32 s47, s2, 0x20001
    s_add_u32 s46, s46, s47
    s_mul_i32 s46, s46, {9*18432}
    s_add_u32 s46, s46, {WQKVP}
    s_cmp_eq_u32 s{LAY}, 0
    s_cselect_b32 s46, s46, {OOB - 0x100000}
    """)
    NPRE = 4

    def pre():
        for G in range(2, NPRE):
            for o in gb_dma_ops(k, G, 18, 33, 1):
                o()
    k.e(f"s_add_u32 s44, s27, {F_F1E - F_F1}")
    k.wawait(44, 8)
    for G in range(2):
        for o in gb_act_ops(k, G, 18, 38, 39):
            o()
    Lp = k.lab("late")
    k.e(f"""
    s_barrier
    s_cmp_lg_u32 s16, 0
    s_cbranch_scc1 {Lp}
    v_mov_b32 v13, s{LAY}
    v_mov_b32 v14, s{NON}
    s_mov_b64 exec, 1
    buffer_store_dword v14, v13, {SA}, s40 offen sc1
    s_mov_b64 exec, -1
    """)
    k.label(Lp)
    NPRE = 2
    k.e(f"""
    v_lshl_add_u32 v13, v0, 7, s{LAY}
    v_mov_b32 v14, s{NON}
    """)

    def late_load():
        k.e("s_mov_b64 exec, 0xff")
        k.vm(f"buffer_load_dword v14, v13, {SA}, s27 offen sc1", tag="late")
        k.e("s_mov_b64 exec, -1")

    def hook(G):
        if G == 4:
            Lok = k.lab("lok")
            k.wait(vm="late")
            k.e(f"""
            v_cmp_ne_u32 vcc, s{NON}, v14
            s_nop 4
            s_cbranch_vccz {Lok}
            """)
            q, n = list(k.vmq), getattr(k, "nst", 0)
            k.wawait(27, 8)
            k.vmq, k.nst = q, n
            k.label(Lok)
    extra = {2: [late_load], 7: gb_dma_ops(k, 0, 9, 46, 2, "q"), 8: gb_dma_ops(k, 1, 9, 46, 2, "q")}
    gb_main(k, 18, 33, 38, 39, False, NPRE, 1, extra, hook, skip0=True)
    gb_exchange(k)
    XR = ACT
    PB = ACT + 8
    SM = ACT + 56
    k.e(f"""
    s_lshl_b32 s40, s36, 2
    s_add_u32 s40, s40, s32
    s_mul_i32 s41, s40, 4608
    s_mul_i32 s40, s40, {4*5120}
    s_add_u32 s40, s40, {PART}
    s_mul_i32 s45, s30, 5120
    s_add_u32 s45, s40, s45
    v_lshlrev_b32 v12, 3, v0
    v_add_u32 v7, 4096, v12
    s_lshl_b32 s44, s30, 10
    v_add_u32 v10, s44, v1
    v_lshrrev_b32 v11, 1, v3
    v_lshlrev_b32 v11, 8, v11
    v_lshl_add_u32 v11, v2, 4, v11
    v_and_b32 v4, 1, v3
    v_lshl_add_u32 v11, v4, 3, v11
    v_add_u32 v11, 4096, v11
    s_add_u32 s44, s41, {XB}
    buffer_load_dwordx4 {r(XR,4)}, v10, {SA}, s44 offen {SC}
    buffer_load_dwordx2 {r(XR+4,2)}, v11, {SA}, s44 offen {SC}
    s_lshl_b32 s44, s30, 10
    v_add_u32 v15, s44, v1
    s_lshl_b32 s44, s30, 4
    s_lshl_b64 s[42:43], 0xffff, s44
    v_mov_b32 v4, 0x00003f80
    v_mov_b32 v5, 0x3f800000
    v_mov_b32 v6, 0x3f803f80
    """)
    for nt in range(9):
        gb_xadd(k, nt)
    for i in range(4):
        Lo, Ln = k.lab("own"), k.lab("nxt")
        d = WFR + 4 * i
        k.e(f"""
        s_cmp_eq_u32 s30, {i}
        s_cbranch_scc1 {Lo}
        """)
        for c in range(4):
            k.e(f"v_cvt_pk_bf16_f32 v{d+c}, v{ACC+8*c+i}, v{ACC+8*c+4+i}")
        k.e(f"buffer_store_dwordx4 {r(d,4)}, v1, {SA}, s45 offen offset:{1024*i} {SC}")
        k.e(f"s_branch {Ln}")
        k.label(Lo)
        for c in range(8):
            k.e(f"v_mov_b32 v{SM+c}, v{ACC+4*c+i}")
        k.label(Ln)
    k.e(f"""
    v_cvt_pk_bf16_f32 v{WFR+16}, v{ACC+32}, v{ACC+33}
    v_cvt_pk_bf16_f32 v{WFR+17}, v{ACC+34}, v{ACC+35}
    buffer_store_dwordx2 {r(WFR+16,2)}, v7, {SA}, s45 offen {SC}
    """)
    for c in range(4):
        k.e(f"v_mov_b32 v{SM+8+c}, v{ACC+32+c}")
    k.publish(19)
    k.await_(28, 4)
    for p in range(3):
        k.e(f"""
        s_add_u32 s44, s30, {p+1}
        s_and_b32 s44, s44, 3
        s_mul_i32 s44, s44, 5120
        s_add_u32 s44, s44, s40
        """)
        k.vm(f"buffer_load_dwordx4 {r(PB+6*p,4)}, v15, {SA}, s44 offen {SC}", tag=("pp", p))
        k.vm(f"buffer_load_dwordx2 {r(PB+6*p+4,2)}, v7, {SA}, s44 offen {SC}", tag=("pp", p))
    for p in range(3):
        k.wait(vm=("pp", p))
        for d in range(6):
            k.e(f"v_dot2c_f32_bf16 v{SM+2*d}, v{PB+6*p+d}, v4")
            k.e(f"v_dot2c_f32_bf16 v{SM+2*d+1}, v{PB+6*p+d}, v5")
    k.e("s_nop 2")
    T = WFR + 8
    for hh in range(3):
        resid_round(k, [SM + 4 * hh + c for c in range(4)], XR + 2 * hh, WFR + 2 * hh, T)
    Lfin, Lend = (k.lab(x) for x in ("ffin", "fend"))
    k.e(f"""
    s_cmp_lg_u32 s{LAY}, 0
    s_cbranch_scc1 {Lfin}
    s_add_u32 s44, s41, {XA}
    v_mov_b32 v16, 0
    v_mov_b32 v17, 0
    buffer_store_dwordx4 {r(WFR,4)}, v10, {SA}, s44 offen {SC}
    """)
    for d in range(4):
        k.e(f"v_dot2c_f32_bf16 v16, v{WFR+d}, v6")
        k.e(f"v_dot2c_f32_bf16 v17, v{WFR+d}, v{WFR+d}")
    k.e(f"""
    s_mov_b64 exec, s[42:43]
    buffer_store_dwordx2 {r(WFR+4,2)}, v11, {SA}, s44 offen {SC}
    """)
    for d in range(4, 6):
        k.e(f"v_dot2c_f32_bf16 v16, v{WFR+d}, v6")
        k.e(f"v_dot2c_f32_bf16 v17, v{WFR+d}, v{WFR+d}")
    k.e(f"""
    s_mov_b64 exec, -1
    s_lshl_b32 s44, s36, 4
    s_lshl_b32 s45, s32, 2
    s_add_u32 s44, s44, s45
    s_add_u32 s44, s44, s30
    s_lshl_b32 s44, s44, 7
    s_add_u32 s44, s44, {STA}
    """)
    reduce_g(k, 16, 18)
    k.e(f"""
    s_mov_b64 exec, 0xffff
    buffer_store_dwordx2 v[16:17], v12, {SA}, s44 offen {SC}
    s_mov_b64 exec, -1
    """)
    nst0 = getattr(k, "nst", 0)
    k.publish(29, slot=4)
    k.e(f"""
    s_mov_b32 s{LAY}, {CSTR}
    s_branch {Lloop}
    """)
    k.label(Lfin)
    k.e(f"""
    s_mov_b32 s44, s6
    s_mov_b32 s45, s7
    s_mov_b32 s46, {2048*576*2}
    s_mov_b32 s47, 0x20000
    s_mul_i32 s40, s36, {16*1152}
    s_mul_i32 s41, s32, 288
    s_add_u32 s40, s40, s41
    s_lshl_b32 s41, s30, 6
    s_add_u32 s41, s41, s40
    v_mul_u32_u24 v10, 1152, v2
    v_lshl_add_u32 v11, v3, 3, v10
    v_lshl_add_u32 v10, v3, 4, v10
    buffer_store_dwordx4 {r(WFR,4)}, v10, s[44:47], s41 offen
    s_mov_b64 exec, s[42:43]
    buffer_store_dwordx2 {r(WFR+4,2)}, v11, s[44:47], s40 offen offset:256
    s_mov_b64 exec, -1
    """)
    if Kern.STAMPS:
        k.nst = nst0
        k.stamp()
        k.wait_all()
        k.stamp()
        k.dump(4)


def phase0(k):
    Lx, Lq, Lo, Lt, Ld16, Ldone, Lq2, Lwt, Lwj, Lpub, Lp4 = (k.lab(x) for x in ("x", "q", "o", "t", "d16", "p0done", "q2", "wt", "wj", "p0pub", "p4"))
    k.lane_setup()
    k.e(f"""
    v_mov_b32 v28, 0x3f803f80
    v_mov_b32 v29, 0x3f803f80
    v_mov_b32 v30, 0x3f803f80
    v_mov_b32 v31, 0x3f803f80
    s_mov_b32 s36, 0x05040100
    s_mov_b32 s37, 0x07060302
    s_mov_b32 s{PS+3}, 0x20000
    s_cmp_ge_u32 s2, 216
    s_cbranch_scc1 {Lo}
    s_cmp_lt_u32 s16, 2
    s_cbranch_scc1 {Lq}
    s_cmp_lg_u32 s16, 2
    s_cbranch_scc1 {Lq2}
    s_cmp_ge_u32 s2, 128
    s_cbranch_scc1 {Lq2}
    """)
    SRC = f"s[{PS}:{PS+3}]"

    def loads():
        for j in range(8):
            k.e(f"buffer_load_dwordx4 v[{32+4*j}:{35+4*j}], v10, {SRC}, s{20+j} offen")

    def perms(c, d):
        for jp in range(4):
            k.e(f"v_perm_b32 v{d+jp}, v{32+4*(2*jp+1)+(c>>1)}, v{32+4*(2*jp)+(c>>1)}, s{36+(c&1)}")

    k.e(f"""
    s_mov_b32 s{PS}, s40
    s_mov_b32 s{PS+1}, s41
    s_mov_b32 s{PS+2}, {2048*576*2}
    s_lshl_b32 s30, s2, 4
    v_add_u32 v5, s30, v2
    v_mul_u32_u24 v10, 1152, v5
    v_lshl_add_u32 v10, v3, 4, v10
    s_mul_i32 s30, s2, {18*1024}
    s_add_u32 s30, s30, {XA}
    v_mov_b32 v12, 0
    v_mov_b32 v13, 0
    s_lshl_b32 s31, s2, 11
    s_add_u32 s31, s31, {STA}
    v_lshlrev_b32 v14, 3, v0
    buffer_store_dwordx2 v[12:13], v14, {SA}, s31 offen offset:512 {SC}
    buffer_store_dwordx2 v[12:13], v14, {SA}, s31 offen offset:1024 {SC}
    buffer_store_dwordx2 v[12:13], v14, {SA}, s31 offen offset:1536 {SC}
    """)
    k.vmq = []
    for kb in range(18):
        k.vm(f"buffer_load_dwordx4 v[{32+4*kb}:{35+4*kb}], v10, {SRC}, 0 offen offset:{64*kb}", tag=("x", kb))
    for kb in range(18):
        k.wait(vm=("x", kb))
        if kb % 4 == 0 and kb:
            k.e(f"s_add_u32 s30, s30, 4096")
        k.vm(f"buffer_store_dwordx4 v[{32+4*kb}:{35+4*kb}], v1, {SA}, s30 offen offset:{1024*(kb%4)} {SC}")
        for d in range(4):
            k.e(f"v_dot2c_f32_bf16 v12, v{32+4*kb+d}, v28")
            k.e(f"v_dot2c_f32_bf16 v13, v{32+4*kb+d}, v{32+4*kb+d}")
    k.e(f"""
    s_nop 2
    buffer_store_dwordx2 v[12:13], v14, {SA}, s31 offen {SC}
    s_branch {Lq2}
    """)
    k.label(Lq)
    sdiv(k, 18, 17, 2, 18, 19)
    k.e(f"""
    s_mov_b32 s{PS}, s42
    s_mov_b32 s{PS+1}, s43
    s_mov_b32 s{PS+2}, {576*1728*2}
    """)
    for j in range(8):
        k.e(f"s_mov_b32 s{20+j}, {j*3456}")
    k.e(f"""
    s_lshl_b32 s30, s16, 4
    v_add_u32 v5, s30, v2
    s_lshl_b32 s30, s17, 5
    v_lshl_add_u32 v10, v3, 3, s30
    v_mul_u32_u24 v10, 3456, v10
    s_mul_i32 s30, s18, 288
    v_lshl_add_u32 v9, v5, 4, s30
    v_add_u32 v10, v10, v9
    v_cmp_gt_u32 vcc, 18, v5
    s_and_saveexec_b64 s[34:35], vcc
    """)
    loads()
    k.e(f"""
    v_lshlrev_b32 v5, 3, v5
    v_lshlrev_b32 v11, 8, v3
    s_cmp_lt_u32 s18, 8
    s_cselect_b64 s[32:33], -1, 0
    """)
    for c in range(8):
        k.e(f"""
        v_add_u32 v6, {c}, v5
        v_mul_u32_u24 v9, 3641, v6
        v_lshrrev_b32 v9, 16, v9
        v_mul_u32_u24 v8, 18, v9
        v_sub_u32 v8, v6, v8
        v_lshrrev_b32 v64, 3, v8
        v_lshlrev_b32 v64, 2, v64
        v_and_or_b32 v64, v8, 3, v64
        v_bfe_u32 v65, v8, 2, 1
        v_and_b32 v66, 6, v9
        v_add_u32 v66, v66, v65
        v_lshlrev_b32 v66, 4, v66
        v_and_b32 v67, 1, v9
        v_lshl_add_u32 v66, v67, 3, v66
        v_lshlrev_b32 v67, 4, v9
        v_lshl_add_u32 v67, v65, 3, v67
        v_cmp_gt_u32 vcc, 16, v8
        v_lshl_add_u32 v68, v9, 1, v8
        v_add_u32 v68, 112, v68
        v_cndmask_b32 v66, v67, v66, s[32:33]
        v_add_u32 v66, v66, v64
        v_cndmask_b32 v66, v68, v66, vcc
        v_lshrrev_b32 v67, 4, v66
        v_and_b32 v66, 15, v66
        v_lshl_add_u32 v66, v66, 4, v11
        v_lshl_add_u32 v{12+c}, v67, 10, v66
        """)
    k.e("s_waitcnt vmcnt(0)")
    for c in range(8):
        perms(c, 64 + 4 * c)
        k.e(f"ds_write_b128 v{12+c}, v[{64+4*c}:{67+4*c}]")
    k.e(f"""
    s_mov_b64 exec, -1
    s_waitcnt lgkmcnt(0)
    """)
    k.label(Lq2)
    sdiv(k, 18, 17, 2, 18, 19)
    sdiv(k, 32, 33, 17, 9, 19)
    k.e(f"""
    s_mul_i32 s30, s18, 9
    s_add_u32 s30, s30, s33
    s_lshl_b32 s30, s30, 1
    s_add_u32 s30, s30, s32
    s_mul_i32 s30, s30, 9216
    s_lshl_b32 s31, s16, 10
    s_add_u32 s30, s30, s31
    s_add_u32 s30, s30, {WQKVP}
    v_add_u32 v5, s31, v1
    s_mul_i32 s31, s17, 12
    s_add_u32 s31, s31, s18
    s_mul_i32 s31, s31, 576
    s_lshl_b32 s34, s16, 6
    s_add_u32 s31, s31, s34
    s_add_u32 s31, s31, {CSQ}
    v_lshlrev_b32 v6, 2, v0
    s_barrier
    ds_read_b128 v[16:19], v5
    ds_read_b128 v[20:23], v5 offset:8192
    s_waitcnt lgkmcnt(0)
    buffer_store_dwordx4 v[16:19], v1, {SW}, s30 offen {SC}
    v_mfma_f32_16x16x32_bf16 v[24:27], v[28:31], v[16:19], 0
    v_mfma_f32_16x16x32_bf16 v[8:11], v[28:31], v[20:23], 0
    s_add_u32 s30, s30, 8192
    s_mov_b64 exec, 0xffff
    buffer_store_dword v24, v6, {SW}, s31 offen {SC}
    s_mov_b64 exec, -1
    s_cmp_lg_u32 s16, 0
    s_cbranch_scc1 {Lpub}
    buffer_store_dwordx4 v[20:23], v1, {SW}, s30 offen {SC}
    s_mov_b64 exec, 0xffff
    buffer_store_dword v8, v6, {SW}, s31 offen offset:512 {SC}
    s_mov_b64 exec, -1
    s_branch {Lpub}
    """)
    k.label(Lo)
    k.e(f"""
    s_sub_u32 s38, s2, 216
    s_lshl_b32 s38, s38, 3
    s_add_u32 s38, s38, s16
    s_cmp_ge_u32 s38, 96
    s_cbranch_scc1 {Lt}
    s_cmp_ge_u32 s38, 90
    s_cbranch_scc1 {Lpub}
    """)
    sdiv(k, 17, 18, 38, 5, 19)
    k.e(f"""
    s_mov_b32 s{PS}, s44
    s_mov_b32 s{PS+1}, s45
    s_mov_b32 s{PS+2}, {576*576*2}
    s_lshl_b32 s30, s18, 3
    v_lshrrev_b32 v5, 1, v2
    v_add_u32 v5, s30, v5
    v_and_b32 v6, 1, v2
    v_lshlrev_b32 v6, 7, v6
    v_lshl_add_u32 v6, v3, 8, v6
    s_lshl_b32 s30, s18, 8
    v_lshlrev_b32 v7, 4, v2
    v_add_u32 v7, s30, v7
    s_cmp_ge_u32 s17, 16
    s_cbranch_scc1 {Lwt}
    """)
    for j in range(8):
        k.e(f"s_mov_b32 s{20+j}, {j*1152}")
    k.e(f"""
    s_mul_i32 s30, s17, 36
    v_lshrrev_b32 v10, 1, v3
    v_mul_u32_u24 v10, 18, v10
    v_and_b32 v9, 1, v3
    v_lshl_add_u32 v10, v9, 3, v10
    v_add_u32 v10, s30, v10
    s_branch {Lwj}
    """)
    k.label(Lwt)
    for j in range(8):
        k.e(f"s_mov_b32 s{20+j}, {(18*(j>>1) + (j&1))*1152}")
    k.e(f"""
    s_sub_u32 s30, s17, 16
    s_mul_i32 s30, s30, 288
    s_add_u32 s30, s30, 16
    v_mul_u32_u24 v10, 72, v3
    v_add_u32 v10, s30, v10
    """)
    k.label(Lwj)
    k.e(f"""
    v_mul_u32_u24 v10, 1152, v10
    v_add_u32 v10, v10, v7
    """)
    loads()
    k.e(f"""
    s_mul_i32 s20, s18, {8*18}
    s_add_u32 s20, s20, s17
    s_lshl_b32 s20, s20, 10
    s_add_u32 s20, s20, {WOP}
    """)
    for i in range(1, 8):
        k.e(f"s_add_u32 s{20+i}, s20, {18432*i}")
    k.e(f"s_branch {Ld16}")
    k.label(Lt)
    k.e(f"""
    s_sub_u32 s17, s38, 96
    s_cmp_ge_u32 s17, 72
    s_cbranch_scc1 {Lpub}
    s_mov_b32 s{PS}, s{PS+26}
    s_mov_b32 s{PS+1}, s{PS+27}
    s_mov_b32 s{PS+2}, {4608*576*2}
    """)
    w2_rows(k, 17, 20, 28, 10, 3, 5)
    k.e(f"""
    v_bfe_u32 v5, v2, 1, 2
    v_mul_u32_u24 v6, 288, v5
    v_add_u32 v10, v10, v6
    v_mul_u32_u24 v12, {CGS}, v5
    v_and_b32 v5, 1, v2
    v_lshl_add_u32 v10, v5, 4, v10
    v_add_u32 v10, 256, v10
    v_lshl_add_u32 v12, v5, 7, v12
    v_lshl_add_u32 v12, v3, 8, v12
    v_lshrrev_b32 v5, 3, v2
    v_mul_u32_u24 v6, {2304*1152}, v5
    v_add_u32 v10, v10, v6
    """)
    loads()
    for i in range(8):
        k.e(f"s_add_u32 s{20+i}, s31, {W2P + 8192 + (i&3)*CGS + (i>>2)*2*18*2*9216}")
    k.label(Ld16)
    k.e(f"""
    s_lshl_b32 s30, s16, 13
    v_lshrrev_b32 v12, 1, v2
    v_lshlrev_b32 v12, 10, v12
    v_and_b32 v5, 1, v2
    v_lshl_add_u32 v12, v5, 7, v12
    v_lshl_add_u32 v12, v3, 8, v12
    v_add_u32 v12, s30, v12
    v_add_u32 v13, s30, v1
    s_waitcnt vmcnt(0)
    """)
    for c in range(8):
        perms(c, 64 + 4 * c)
        k.e(f"ds_write_b128 v12, v[{64+4*c}:{67+4*c}] offset:{16*c}")
    k.e("s_waitcnt lgkmcnt(0)")
    for c in range(8):
        k.e(f"ds_read_b128 v[{32+4*c}:{35+4*c}], v13 offset:{1024*c}")
    for c in range(8):
        k.e(f"s_waitcnt lgkmcnt({7-c})")
        k.e(f"buffer_store_dwordx4 v[{32+4*c}:{35+4*c}], v1, {SW}, s{20+c} offen {SC}")
    k.label(Lpub)
    Ln, Lnd = k.lab("n"), k.lab("nd")
    k.e(f"""
    s_mov_b32 s{PS}, s46
    s_mov_b32 s{PS+1}, s47
    s_mov_b32 s{PS+2}, 256
    v_mov_b32 v13, 0
    s_mov_b32 s3, 0x40000
    s_mov_b64 exec, 1
    """)
    k.label(Ln)
    k.e(f"""
    buffer_load_dword v14, v13, {SRC}, 0 offen sc1
    s_waitcnt vmcnt(0) lgkmcnt(0)
    v_readfirstlane_b32 s{NON}, v14
    s_sub_u32 s3, s3, 1
    s_cbranch_scc1 {Lnd}
    s_cmp_eq_u32 s{NON}, 0
    s_cbranch_scc1 {Ln}
    """)
    k.label(Lnd)
    k.e(f"""
    s_barrier
    s_cmp_lg_u32 s16, 0
    s_cbranch_scc1 {Lp4}
    s_lshl_b32 s30, s2, 7
    s_add_u32 s30, s30, {F_P0}
    buffer_store_dword v14, v13, {SA}, s30 offen sc1
    s_sub_u32 s30, s2, 216
    s_cmp_ge_u32 s30, 12
    s_cbranch_scc1 {Lp4}
    s_mov_b64 exec, 15
    v_lshlrev_b32 v13, 13, v0
    v_mov_b32 v14, s{NON}
    s_lshl_b32 s30, s30, 7
    s_add_u32 s30, s30, {F_QKV + 48*128}
    buffer_store_dword v14, v13, {SA}, s30 offen sc1
    """)
    k.label(Lp4)
    k.e("s_mov_b64 exec, -1")
    k.label(Ldone)
    k.vmq, k.lgq = [], []


def gen_mega(name="mega_kernel"):
    k = Mega(name, vgpr=256, sgpr=102 if Kern.STAMPS else 82)
    Kern.STAMP_S = 82
    Lexit, Lloop, Lnn = k.lab("exit"), k.lab("loop"), k.lab("nn")
    k.e(f"""
    s_cmp_ge_u32 s2, 256
    s_cbranch_scc1 {Lexit}
    s_load_dwordx2 s[4:5], s[0:1], 72
    s_load_dwordx2 s[6:7], s[0:1], 56
    s_load_dwordx4 s[40:43], s[0:1], 0
    s_load_dwordx2 s[44:45], s[0:1], 16
    s_load_dwordx2 s[46:47], s[0:1], 64
    s_load_dwordx4 s[{PS+20}:{PS+23}], s[0:1], 24
    s_load_dwordx4 s[{PS+24}:{PS+27}], s[0:1], 40
    s_memrealtime s[38:39]
    v_lshrrev_b32 v1, 6, v0
    s_mov_b32 s{LAY}, 0
    s_mov_b32 s{NON}, 0
    v_readfirstlane_b32 s16, v1
    s_waitcnt lgkmcnt(0)
    s_mov_b32 s8, s4
    s_mov_b32 s9, s5
    s_mov_b32 s10, {WS_USED + (0x400000 if Kern.STAMPS else 0)}
    s_mov_b32 s11, 0x20000
    s_add_u32 s12, s4, {ABASE}
    s_addc_u32 s13, s5, 0
    s_mov_b32 s14, {ASIZE}
    s_mov_b32 s15, 0x20000
    s_cmp_lg_u32 s2, 255
    s_cbranch_scc1 {Lnn}
    s_cmp_lg_u32 s16, 0
    s_cbranch_scc1 {Lnn}
    s_or_b32 s38, s38, 1
    v_mov_b32 v2, s38
    v_mov_b32 v3, 0
    s_mov_b64 exec, 1
    global_store_dword v3, v2, s[46:47] sc1
    s_mov_b64 exec, -1
    """)
    k.label(Lnn)
    if Kern.STAMPS:
        k.e("s_mov_b32 s81, s38")
    phase0(k)
    k.label(Lloop)
    phase_qkv(k)
    k.nst = 0
    phase_attn(k)
    phase_wo(k)
    phase_ffn1(k)
    phase_ffn2(k, Lloop)
    k.label(Lexit)
    k.e("s_endpgm")
    return k
```
